```python
import torch

def _softmax(x, axis=-1):
    return torch.softmax(x, dim=axis)
def _gelu(x):
    return torch.nn.functional.gelu(x, approximate="tanh")
def _silu(x):
    return torch.nn.functional.silu(x)
def _sigmoid(x):
    return torch.sigmoid(x)
def _layernorm(x, axis=-1, eps=1e-5):
    m = x.mean(dim=axis, keepdim=True)
    v = x.var(dim=axis, keepdim=True, unbiased=False)
    return (x - m) / torch.sqrt(v + eps)
def _scatter_add(tgt, idx, src, axis=0):
    return tgt.clone().index_add_(axis, idx, src)
def _segment_sum(src, seg, n):
    out = torch.zeros((n,) + src.shape[1:], dtype=src.dtype)
    return out.index_add_(0, seg, src)
def _pad(x, pw):
    flat = tuple(v for pair in reversed(pw) for v in pair)
    return torch.nn.functional.pad(x, flat)

kernel_name = 'standalone__paged_block_table_kv_pagedattention__prompt'

def setup_inputs():

    _w = (lambda a: (lambda t: t.to(torch.bfloat16) if t.is_floating_point() else t)(torch.as_tensor(a)))
    B, Hq, Hkv, Sq, Skv, D = 1, 32, 16, 2048, 2048, 128
    bs = 16
    nbps = max(1, Skv // bs)
    num_phys = B * nbps + 4
    bt = torch.randperm(num_phys)[: B * nbps].reshape(B, nbps).to(torch.int64)
    cl = (nbps * bs - (torch.arange(1, B + 1, dtype=torch.int64) * 2654435761) % max(1, nbps * bs // 2)).to(torch.int64)
    return {
        "q": _w((lambda *s: torch.randn(*s, dtype=torch.bfloat16) * 0.8)(B, Hq, Sq, D)),
        "k_cache": _w((lambda *s: torch.randn(*s, dtype=torch.bfloat16) * 0.8)(num_phys, bs, Hkv, D)),
        "v_cache": _w((lambda *s: torch.randn(*s, dtype=torch.bfloat16) * 0.05)(num_phys, bs, Hkv, D)),
        "block_table": _w(bt),
        "context_lens": _w(cl),
    }

def reference(q, k_cache, v_cache, block_table, context_lens):
    B, Hq, Sq, D = q.shape
    bs = k_cache.shape[1]
    Hkv = k_cache.shape[2]
    nbps = block_table.shape[1]
    Skv = nbps * bs
    bt = block_table.reshape(-1)
    k = (lambda x, *d: x.permute(*d))(k_cache[bt].reshape(B, Skv, Hkv, D), 0, 2, 1, 3)
    v = (lambda x, *d: x.permute(*d))(v_cache[bt].reshape(B, Skv, Hkv, D), 0, 2, 1, 3)
    g = Hq // Hkv
    qg = q.reshape(B, Hkv, g, Sq, D)
    scores = torch.einsum("bhgqd,bhkd->bhgqk", qg, k) * (D ** -0.5)
    pos = torch.arange(Skv)
    msk = pos[None, :] < context_lens[:, None]
    scores = torch.where(msk[:, None, None, None, :], scores, -1e9)
    p = _softmax(scores, axis=-1)
    out = torch.einsum("bhgqk,bhkd->bhgqd", p, v)
    return out.reshape(B, Hq, Sq, D)
```

```python
import sys, struct, math

NAME = "standalone__paged_block_table_kv_pagedattention__prompt"

HEADER = """; Kernarg layout for this problem (64 bytes, ptrs only, base s[0:1]):
"""

def f32bits(x):
    return struct.unpack("<I", struct.pack("<f", x))[0]

S_W = 3; S_CL = 4; S_N = 5; S_REM = 6; S_T = 7; S_IDX = 8; S_END = 9
S_OFF = [10, 11]; S_DMAB = 12; S_QLDS = 13; S_ROW = 14; S_HEAD = 15
S_PTR = 16
S_C = 32
S_T2 = 34; S_ZERO = 35
SRD_Q = 36; SRD_K = 40; SRD_V = 44; SRD_O = 48; SRD_BT = 52; SRD_D = 56
S_MASK = 60
S_STAMP = 92
V_S = [[16, 32], [48, 64]]
V_NEGM = [80, 96]
V_P = [[112, 116], [120, 124]]
V_Q = [128, 160]
V_KA = 192; V_VA = 200; V_DV = 204; V_BT = 208; V_L = [209, 210]
V_T = 212
V_LANE = 2
A_O = [0, 64]; A_K = 128; A_V = 160

LDS_Q = 65536
LDS_TOTAL = 131072
VSHIFT = 4096
KV_BYTES = 132 * 65536
Q_BYTES = 16777216


def vr(b, n=1):
    return f"v{b}" if n == 1 else f"v[{b}:{b+n-1}]"
def ar(b, n=1):
    return f"a{b}" if n == 1 else f"a[{b}:{b+n-1}]"
def sr(b, n=1):
    return f"s{b}" if n == 1 else f"s[{b}:{b+n-1}]"


class Gen:
    def __init__(self, opt):
        self.o = opt
        self.L = []
    def e(self, s):
        self.L.append("    " + s)
    def lab(self, s):
        self.L.append(s + ":")
    def c(self, s):
        self.L.append("    ; " + s)

    def mfma_qk(self, buf, blk, s, cinit):
        d = vr(V_S[buf][blk], 16)
        c = d if s > 0 else cinit
        return f"v_mfma_f32_32x32x16_bf16 {d}, {ar(A_K+4*s,4)}, {vr(V_Q[blk]+4*s,4)}, {c}"
    def mfma_pv(self, blk, t, db):
        d = ar(A_O[blk] + 16*db, 16)
        return f"v_mfma_f32_32x32x16_bf16 {d}, {ar(A_V+4*(4*t+db),4)}, {vr(V_P[t][blk],4)}, {d}"
    def kread(self, s, stage):
        return f"ds_read_b128 {ar(A_K+4*s,4)}, {vr(V_KA+s)} offset:{stage*16384}"
    def vread(self, i, stage):
        f, u = i // 2, i % 2
        t, db = f // 4, f % 4
        return f"ds_read_b64_tr_b16 {ar(A_V+4*f+2*u,2)}, {vr(V_VA+db)} offset:{stage*16384+(2*t+u)*4096}"
    def dma(self, kind, u, soff):
        if kind == 'K':
            off = u * 1024
            return f"buffer_load_dwordx4 {vr(V_DV+u)}, {sr(SRD_K,4)}, {sr(soff)} offen" + (f" offset:{off}" if off else "") + " lds"
        off = 2048 + u * 1024
        return f"buffer_load_dwordx4 {vr(V_DV+2+u)}, {sr(SRD_V,4)}, {sr(soff)} offen offset:{off} lds"
    def elem(self, buf, e):
        t, blk, i = e // 16, (e // 8) % 2, e % 8
        return blk, V_S[buf][blk] + 8*t + i, t, i
    def sm_exp(self, buf, e):
        blk, r, t, i = self.elem(buf, e)
        return f"v_exp_f32 {vr(r)}, {vr(r)}"
    def sm_add(self, buf, e):
        blk, r, t, i = self.elem(buf, e)
        return f"v_add_f32 {vr(V_L[blk])}, {vr(V_L[blk])}, {vr(r)}"
    def sm_cvt(self, buf, e):
        blk, r, t, i = self.elem(buf, e)
        return f"v_cvt_pk_bf16_f32 {vr(V_P[t][blk]+i//2)}, {vr(r-1)}, {vr(r)}"

    def stamp(self, k):
        if self.o.get('stamp'):
            self.e(f"s_memtime {sr(S_STAMP+2*k,2)}" if not self.o.get('rt') else f"s_memrealtime {sr(S_STAMP+2*k,2)}")

    def prologue(self):
        e = self.e
        e(f"s_cmp_ge_u32 s2, 256")
        e("s_cbranch_scc1 L_end")
        e(f"s_load_dwordx16 {sr(S_PTR,16)}, s[0:1], 0")
        self.stamp(0)
        e("v_lshrrev_b32 v1, 6, v0")
        e(f"v_and_b32 {vr(V_LANE)}, 63, v0")
        e(f"v_readfirstlane_b32 {sr(S_W)}, v1")
        e(f"s_and_b32 {sr(S_T)}, s2, 7")
        e(f"s_lshl_b32 {sr(S_T)}, {sr(S_T)}, 1")
        e(f"s_bfe_u32 {sr(S_HEAD)}, s2, 0x10003")
        e(f"s_add_u32 {sr(S_HEAD)}, {sr(S_HEAD)}, {sr(S_T)}")
        e(f"s_lshr_b32 {sr(S_T)}, s2, 4")
        e(f"s_lshl_b32 {sr(S_ROW)}, {sr(S_HEAD)}, 4")
        e(f"s_add_u32 {sr(S_ROW)}, {sr(S_ROW)}, {sr(S_T)}")
        e(f"s_lshl_b32 {sr(S_ROW)}, {sr(S_ROW)}, 2")
        e(f"s_add_u32 {sr(S_ROW)}, {sr(S_ROW)}, {sr(S_W)}")
        e(f"s_lshl_b32 {sr(S_ROW)}, {sr(S_ROW)}, 14")
        e(f"s_lshl_b32 {sr(S_HEAD)}, {sr(S_HEAD)}, 8")
        e(f"s_lshl_b32 {sr(S_DMAB)}, {sr(S_W)}, 12")
        e(f"s_lshl_b32 {sr(S_QLDS)}, {sr(S_W)}, 14")
        e(f"s_add_u32 {sr(S_QLDS)}, {sr(S_QLDS)}, {LDS_Q}")
        e(f"v_lshrrev_b32 v3, 4, {vr(V_LANE)}")
        e(f"v_and_b32 v4, 15, {vr(V_LANE)}")
        e("v_xor_b32 v5, v4, v3")
        e("v_lshlrev_b32 v5, 4, v5")
        e("v_lshl_add_u32 v5, v3, 8, v5")
        e("v_xor_b32 v6, 64, v5")
        e("v_xor_b32 v7, 0x80, v5")
        e("v_xor_b32 v8, 0xc0, v5")
        e(f"s_lshr_b32 {sr(S_T)}, {sr(S_W)}, 1")
        e(f"s_lshl_b32 {sr(S_T2)}, {sr(S_T)}, 2")
        e(f"v_lshl_add_u32 v9, {vr(V_LANE)}, 3, {sr(S_T2)}")
        e("s_waitcnt lgkmcnt(0)")
        e(f"s_load_dword {sr(S_CL)}, {sr(S_PTR+8,2)}, 0")
        def srd(b, p, nbytes):
            e(f"s_mov_b32 {sr(b)}, {sr(p)}")
            e(f"s_and_b32 {sr(b+1)}, {sr(p+1)}, 0xffff")
            e(f"s_mov_b32 {sr(b+2)}, {nbytes}")
            e(f"s_mov_b32 {sr(b+3)}, 0x20000")
        srd(SRD_BT, S_PTR+6, 512)
        srd(SRD_Q, S_PTR+0, Q_BYTES)
        e(f"buffer_load_dword {vr(V_BT)}, v9, {sr(SRD_BT,4)}, 0 offen")
        for k in range(4):
            e(f"s_add_u32 m0, {sr(S_QLDS)}, {4096*k}")
            e(f"s_add_u32 {sr(S_T2)}, {sr(S_ROW)}, {4096*k}")
            for m in range(4):
                e(f"buffer_load_dwordx4 v{5+m}, {sr(SRD_Q,4)}, {sr(S_T2)} offen" + (f" offset:{1024*m}" if m else "") + " lds")
        srd(SRD_K, S_PTR+2, KV_BYTES)
        e(f"s_sub_u32 {sr(SRD_V)}, {sr(S_PTR+4)}, {VSHIFT}")
        e(f"s_subb_u32 {sr(SRD_V+1)}, {sr(S_PTR+5)}, 0")
        e(f"s_and_b32 {sr(SRD_V+1)}, {sr(SRD_V+1)}, 0xffff")
        e(f"s_mov_b32 {sr(SRD_V+2)}, {KV_BYTES+VSHIFT}")
        e(f"s_mov_b32 {sr(SRD_V+3)}, 0x20000")
        srd(SRD_O, S_PTR+10, Q_BYTES)
        if self.o.get('stamp'):
            srd(SRD_D, S_PTR+14, 268435456)
        e(f"s_and_b32 {sr(S_T2)}, {sr(S_W)}, 1")
        e(f"s_lshl_b32 {sr(S_T2)}, {sr(S_T2)}, 3")
        e(f"v_add_u32 v10, {sr(S_T2)}, v3")
        e("v_add_u32 v11, 4, v10")
        e("v_xor_b32 v12, v4, v10")
        e("v_lshlrev_b32 v12, 4, v12")
        e(f"v_lshl_add_u32 {vr(V_DV)}, v10, 12, v12")
        e("v_xor_b32 v12, v4, v11")
        e("v_lshlrev_b32 v12, 4, v12")
        e(f"v_lshl_add_u32 {vr(V_DV+1)}, v11, 12, v12")
        e(f"v_subrev_u32 {vr(V_DV+1)}, 1024, {vr(V_DV+1)}")
        e("v_lshlrev_b32 v12, 2, v3")
        e("v_xor_b32 v12, v4, v12")
        e("v_lshlrev_b32 v12, 4, v12")
        e(f"v_lshl_add_u32 {vr(V_DV+2)}, v10, 12, v12")
        e(f"v_add_u32 {vr(V_DV+2)}, {VSHIFT-2048}, {vr(V_DV+2)}")
        e(f"v_lshl_add_u32 {vr(V_DV+3)}, v11, 12, v12")
        e(f"v_add_u32 {vr(V_DV+3)}, {VSHIFT-3072}, {vr(V_DV+3)}")
        e(f"v_and_b32 v10, 31, {vr(V_LANE)}")
        e(f"v_lshrrev_b32 v11, 5, {vr(V_LANE)}")
        e("v_xor_b32 v12, v11, v4")
        e("v_lshlrev_b32 v12, 4, v12")
        e(f"v_lshl_add_u32 {vr(V_T)}, v10, 8, v12")
        e(f"v_add_u32 {vr(V_T)}, {sr(S_QLDS)}, {vr(V_T)}")
        e("v_lshrrev_b32 v13, 3, v10")
        e("v_and_b32 v14, 7, v10")
        e("v_lshl_add_u32 v12, v13, 12, v12")
        e(f"v_lshl_add_u32 {vr(V_KA)}, v14, 8, v12")
        for s in range(1, 8):
            e(f"v_xor_b32 {vr(V_KA+s)}, {32*s}, {vr(V_KA)}")
            e(f"v_xor_b32 {vr(V_T+s)}, {32*s}, {vr(V_T)}")
        e("v_bfe_u32 v12, v4, 2, 2")
        e("v_lshl_add_u32 v13, v11, 2, v12")
        e("v_lshlrev_b32 v13, 8, v13")
        e("v_and_b32 v14, 1, v3")
        e("v_lshl_add_u32 v13, v14, 5, v13")
        e("v_and_b32 v14, 3, v4")
        e("v_lshl_add_u32 v13, v14, 3, v13")
        e("v_lshl_add_u32 v13, v12, 6, v13")
        e(f"v_add_u32 {vr(V_VA)}, 2048, v13")
        for db in range(1, 4):
            e(f"v_xor_b32 {vr(V_VA+db)}, {64*db}, {vr(V_VA)}")
        e("v_lshlrev_b32 v15, 8, v10")
        e("v_lshl_add_u32 v15, v11, 4, v15")
        e("v_lshlrev_b32 v11, 2, v11")
        for i in range(4):
            e(f"v_mov_b32 {vr(V_P[0][0]+i)}, 0")
        e(f"v_mov_b32 {vr(V_L[0])}, 0")
        e(f"v_mov_b32 {vr(V_L[1])}, 0")
        for i in range(8):
            e(f"v_mfma_f32_32x32x16_bf16 {ar(16*i,16)}, {vr(V_P[0][0],4)}, {vr(V_P[0][0],4)}, 0")
        c = (1.0/math.sqrt(128.0)) * math.log2(math.e)
        e(f"s_mov_b32 {sr(S_C)}, {hex(f32bits(c))}")
        e(f"s_mov_b32 {sr(S_C+1)}, {hex(f32bits(c))}")
        e("s_waitcnt lgkmcnt(0)")
        e(f"s_cmp_le_i32 {sr(S_CL)}, 0")
        e(f"s_cselect_b32 {sr(S_ZERO)}, 1, 0")
        e(f"s_cselect_b32 {sr(S_CL)}, 0x800, {sr(S_CL)}")
        e(f"s_cselect_b32 {sr(SRD_K+2)}, 0, {sr(SRD_K+2)}")
        e(f"s_min_u32 {sr(S_CL)}, {sr(S_CL)}, 0x800")
        e(f"s_add_u32 {sr(S_N)}, {sr(S_CL)}, 31")
        e(f"s_lshr_b32 {sr(S_N)}, {sr(S_N)}, 5")
        e(f"s_sub_u32 {sr(S_IDX)}, {sr(S_N)}, 1")
        e(f"s_lshl_b32 {sr(S_T2)}, {sr(S_IDX)}, 5")
        e(f"s_sub_u32 {sr(S_REM)}, {sr(S_CL)}, {sr(S_T2)}")
        e(f"s_add_u32 {sr(S_END)}, {sr(S_N)}, 3")
        e(f"v_lshlrev_b32 v9, 2, v9")
        e(f"v_cmp_gt_u32 vcc, {sr(S_CL)}, v9")
        e("s_nop 0")
        e("s_waitcnt vmcnt(16)")
        e(f"v_cndmask_b32 {vr(V_BT)}, 0, {vr(V_BT)}, vcc")
        e(f"v_lshlrev_b32 {vr(V_BT)}, 16, {vr(V_BT)}")
        e(f"v_add_u32 {vr(V_BT)}, {sr(S_HEAD)}, {vr(V_BT)}")
        e("s_nop 0")
        T0, T1, T2 = S_MASK, S_MASK+1, S_MASK+2
        e(f"v_readlane_b32 {sr(T0)}, {vr(V_BT)}, {sr(S_IDX)}")
        e(f"v_readlane_b32 {sr(T1)}, {vr(V_BT)}, 0")
        e(f"v_readlane_b32 {sr(T2)}, {vr(V_BT)}, 1")
        e(f"v_readlane_b32 {sr(S_OFF[0])}, {vr(V_BT)}, 2")
        e(f"v_readlane_b32 {sr(S_OFF[1])}, {vr(V_BT)}, 3")
        e(f"s_add_u32 m0, {sr(S_DMAB)}, {3*16384}")
        e(f"s_mov_b32 {sr(S_IDX)}, 4")
        e("s_nop 1")
        e(self.dma('K', 0, T0)); e(self.dma('K', 1, T0))
        e(f"s_add_u32 m0, {sr(S_DMAB)}, 0")
        e("s_nop 0")
        e(self.dma('K', 0, T1)); e(self.dma('K', 1, T1)); e(self.dma('V', 0, T0)); e(self.dma('V', 1, T0))
        e(f"s_add_u32 m0, {sr(S_DMAB)}, {16384}")
        e("s_nop 0")
        e(self.dma('K', 0, T2)); e(self.dma('K', 1, T2)); e(self.dma('V', 0, T1)); e(self.dma('V', 1, T1))
        e(f"s_add_u32 m0, {sr(S_DMAB)}, {2*16384}")
        e("s_nop 0")
        e(self.dma('K', 0, S_OFF[0])); e(self.dma('K', 1, S_OFF[0])); e(self.dma('V', 0, T2)); e(self.dma('V', 1, T2))
        self.stamp(1)
        for blk in range(2):
            e(f"s_waitcnt vmcnt({22 if blk == 0 else 14})")
            for s in range(8):
                e(f"ds_read_b128 {vr(V_Q[blk]+4*s,4)}, {vr(V_T+s)} offset:{8192*blk}")
            TA = V_T + 8
            for s in range(8):
                e(f"s_waitcnt lgkmcnt({7-s})")
                for i in range(4):
                    q = V_Q[blk] + 4*s + i
                    ta = TA + 2*i
                    e(f"v_lshlrev_b32 {vr(ta)}, 16, {vr(q)}")
                    e(f"v_and_b32 {vr(ta+1)}, 0xffff0000, {vr(q)}")
                for i in range(4):
                    ta = TA + 2*i
                    e(f"v_pk_mul_f32 {vr(ta,2)}, {vr(ta,2)}, {sr(S_C,2)}")
                for i in range(4):
                    q = V_Q[blk] + 4*s + i
                    ta = TA + 2*i
                    e(f"v_cvt_pk_bf16_f32 {vr(q)}, {vr(ta)}, {vr(ta+1)}")
        e(f"s_cmp_eq_u32 {sr(S_ZERO)}, 1")
        e("s_cbranch_scc1 L_zeroq")
        self.lab("L_zeroq_ret")
        self.stamp(2)
        e("s_waitcnt vmcnt(12)")
        e("s_barrier")
        for s in range(8):
            e(self.kread(s, 3))
        e(f"v_sub_u32 v10, {sr(S_REM)}, v11")
        e(f"v_mov_b32 v12, 0xff800000")
        for r in range(16):
            kk = 8*(r//4) + r % 4
            e(f"v_cmp_lt_i32 {sr(S_MASK+2*r,2)}, {kk}, v10")
        for s in range(8):
            e(f"s_waitcnt lgkmcnt({7-s})")
            for blk in range(2):
                e(self.mfma_qk(0, blk, s, "0"))
        e("s_waitcnt vmcnt(8)")
        e("s_barrier")
        for s in range(8):
            e(self.kread(s, 0))
        for i in range(4):
            e(self.vread(i, 0))
        e(f"s_add_u32 m0, {sr(S_DMAB)}, {3*16384}")
        e("s_nop 0")
        e(self.dma('V', 0, S_OFF[0])); e(self.dma('V', 1, S_OFF[0]))
        for blk in range(2):
            S = V_S[0][blk]
            for r in range(16):
                e(f"v_cndmask_b32 {vr(S+r)}, v12, {vr(S+r)}, {sr(S_MASK+2*r,2)}")
        for blk in range(2):
            S = V_S[0][blk]
            m = V_T + blk*2
            e(f"v_max3_f32 {vr(m)}, {vr(S)}, {vr(S+1)}, {vr(S+2)}")
            for r in range(3, 15, 2):
                e(f"v_max3_f32 {vr(m)}, {vr(m)}, {vr(S+r)}, {vr(S+r+1)}")
            e(f"v_max_f32 {vr(m)}, {vr(m)}, {vr(S+15)}")
            e(f"v_mov_b32 {vr(m+1)}, {vr(m)}")
        e("s_nop 1")
        for blk in range(2):
            m = V_T + blk*2
            e(f"v_permlane32_swap_b32 {vr(m)}, {vr(m+1)}")
        e("s_nop 1")
        for blk in range(2):
            m = V_T + blk*2
            e(f"v_max_f32 {vr(m)}, {vr(m)}, {vr(m+1)}")
        for blk in range(2):
            m = V_T + blk*2
            for r in range(16):
                e(f"v_sub_f32 {vr(V_NEGM[blk]+r)}, 0, {vr(m)}")
        for blk in range(2):
            m = V_T + blk*2
            S = V_S[0][blk]
            for r in range(16):
                e(f"v_sub_f32 {vr(S+r)}, {vr(S+r)}, {vr(m)}")
        ahead = 32 - self.o['sm_start']
        for k in range(ahead):
            e(self.sm_exp(0, k))
            if k >= 1:
                e(self.sm_add(0, k-1))
                if (k-1) % 2 == 1:
                    e(self.sm_cvt(0, k-1))
        self.stamp(3)
        e(f"s_cmp_eq_u32 {sr(S_N)}, 1")
        e("s_cbranch_scc1 L_drain0")

    def period(self, u):
        o = self.o
        st = o['sm_start']
        cur, nxt = u % 2, (u+1) % 2
        pre = [[] for _ in range(33)]
        post = [[] for _ in range(32)]
        mf = [None]*32
        for k in range(16):
            s, blk = k // 2, k % 2
            mf[k] = self.mfma_qk(nxt, blk, s, vr(V_NEGM[blk], 16))
        for k in range(16):
            f, blk = k // 2, k % 2
            mf[16+k] = self.mfma_pv(blk, f // 4, f % 4)
        if not o.get('no_valu'):
            for k in range(32):
                ee = k - st
                buf, el = (nxt, ee) if ee >= 0 else (cur, ee + 32)
                post[k].append(self.sm_exp(buf, el))
                ee -= 1
                buf, el = (nxt, ee) if ee >= 0 else (cur, ee + 32)
                post[k].append(self.sm_add(buf, el))
                if el % 2 == 1:
                    post[k].append(self.sm_cvt(buf, el))
        if not o.get('no_lds'):
            for i, k in enumerate(o['vread_slots']):
                if k >= 16:
                    post[k].append(self.vread(i, (u+1) % 4))
                else:
                    post[k].append(self.vread(i, u % 4))
            for s, k in enumerate(o['kread_slots']):
                post[k].append(self.kread(s, (u+1) % 4))
        nlate = sum(1 for k in o['vread_slots'] if k >= 16)
        pre[0].append(f"s_waitcnt lgkmcnt({nlate})")
        if o.get('no_dma'):
            pre[16].append("s_waitcnt lgkmcnt(0)")
        else:
            pre[16].append("s_waitcnt vmcnt(8) lgkmcnt(0)")
        if not o.get('no_barrier'):
            pre[16].append("s_barrier")
        if not o.get('no_dma'):
            d = o['dma_slots']
            post[d[0]].append(self.dma('K', 0, S_OFF[(u+3) % 2]))
            post[d[1]].append(self.dma('K', 1, S_OFF[(u+3) % 2]))
            post[o['m0_slot']].append(f"s_add_u32 m0, {sr(S_DMAB)}, {u*16384}")
            post[d[2]].append(self.dma('V', 0, S_OFF[(u+3) % 2]))
            post[d[3]].append(self.dma('V', 1, S_OFF[(u+3) % 2]))
            post[o['rl_slot']].append(f"v_readlane_b32 {sr(S_OFF[u % 2])}, {vr(V_BT)}, {sr(S_IDX)}")
        post[o['cnt_slot']].append(f"s_add_u32 {sr(S_IDX)}, {sr(S_IDX)}, 1")
        post[o['cnt_slot']+1].append(f"s_cmp_eq_u32 {sr(S_IDX)}, {sr(S_END)}")
        self.c(f"---- period {u}")
        for k in range(32):
            for x in pre[k]:
                self.e(x)
            self.e(mf[k])
            for x in post[k]:
                self.e(x)
        self.e(f"s_cbranch_scc1 L_drain{(u+1) % 4}")

    def drain(self, u):
        o = self.o
        st = o['sm_start']
        cur = u % 2
        e = self.e
        self.lab(f"L_drain{u}")
        for i, k in enumerate(o['vread_slots']):
            if k < 16:
                e(self.vread(i, u % 4))
        done = 32 - st
        def step(k):
            if k < 32:
                e(self.sm_exp(cur, k))
            else:
                e("s_nop 0")
            e(self.sm_add(cur, k-1))
            if (k-1) % 2 == 1:
                e(self.sm_cvt(cur, k-1))
        k = done
        while k <= 17:
            step(k); k += 1
        e("s_waitcnt lgkmcnt(0)")
        for m in range(8):
            e(self.mfma_pv(m % 2, 0, m // 2))
            for _ in range(2):
                if k <= 32:
                    step(k); k += 1
        while k <= 32:
            step(k); k += 1
        e("s_nop 1")
        for m in range(8):
            e(self.mfma_pv(m % 2, 1, m // 2))
        e("s_branch L_epi")

    def epilogue(self):
        e = self.e
        self.lab("L_epi")
        self.stamp(4)
        T = V_T
        for blk in range(2):
            e(f"v_mov_b32 {vr(T+blk)}, {vr(V_L[blk])}")
        e("s_nop 1")
        for blk in range(2):
            e(f"v_permlane32_swap_b32 {vr(V_L[blk])}, {vr(T+blk)}")
        e("s_nop 1")
        for blk in range(2):
            e(f"v_add_f32 {vr(V_L[blk])}, {vr(V_L[blk])}, {vr(T+blk)}")
        for blk in range(2):
            e(f"v_rcp_f32 {vr(T+2*blk)}, {vr(V_L[blk])}")
        e("s_nop 0")
        for blk in range(2):
            e(f"v_mov_b32 {vr(T+2*blk+1)}, {vr(T+2*blk)}")
        e("s_nop 7")
        n = 0
        for blk in range(2):
            if blk == 1:
                e(f"s_add_u32 {sr(S_ROW)}, {sr(S_ROW)}, 8192")
            for db in range(4):
                for kp in range(2):
                    W = 16 + 16*(n % 4)
                    n += 1
                    for i in range(8):
                        e(f"v_accvgpr_read_b32 {vr(W+i)}, {ar(A_O[blk]+16*db+8*kp+i)}")
                    for i in range(4):
                        e(f"v_pk_mul_f32 {vr(W+2*i,2)}, {vr(W+2*i,2)}, {vr(T+2*blk,2)}")
                    for i in range(4):
                        e(f"v_cvt_pk_bf16_f32 {vr(W+8+i)}, {vr(W+2*i)}, {vr(W+2*i+1)}")
                    e("s_nop 1")
                    e(f"v_permlane32_swap_b32 {vr(W+8)}, {vr(W+10)}")
                    e(f"v_permlane32_swap_b32 {vr(W+9)}, {vr(W+11)}")
                    off = 64*db + 32*kp
                    e(f"buffer_store_dwordx4 {vr(W+8,4)}, v15, {sr(SRD_O,4)}, {sr(S_ROW)} offen" + (f" offset:{off}" if off else "") + self.o.get('st_flags', ''))
        if self.o.get('stamp'):
            e("s_waitcnt vmcnt(0)")
            e("s_memtime s[62:63]" if not self.o.get('rt') else "s_memrealtime s[62:63]")
            e("s_memrealtime s[64:65]")
            e("s_getreg_b32 s66, hwreg(HW_REG_XCC_ID)")
            e("s_getreg_b32 s67, hwreg(HW_REG_HW_ID)")
            e("s_waitcnt lgkmcnt(0)")
            e("v_mov_b32 v16, 0")
            for k in range(5):
                e(f"v_writelane_b32 v16, {sr(S_STAMP+2*k)}, {k}")
            e("v_writelane_b32 v16, s62, 5")
            e("v_writelane_b32 v16, s64, 6")
            e("v_writelane_b32 v16, s66, 7")
            e("v_writelane_b32 v16, s67, 8")
            e(f"s_lshl_b32 {sr(S_T)}, s2, 2")
            e(f"s_add_u32 {sr(S_T)}, {sr(S_T)}, {sr(S_W)}")
            e(f"s_lshl_b32 {sr(S_T)}, {sr(S_T)}, 8")
            e(f"v_lshlrev_b32 v17, 2, {vr(V_LANE)}")
            e(f"buffer_store_dword v16, v17, {sr(SRD_D,4)}, {sr(S_T)} offen")
        self.lab("L_end")
        e("s_endpgm")
        self.lab("L_zeroq")
        for i in range(64):
            e(f"v_mov_b32 {vr(V_Q[0]+i)}, 0")
        e("s_nop 1")
        e("s_branch L_zeroq_ret")

    def build(self):
        self.prologue()
        if self.o.get('align'):
            self.L.append(f".p2align {self.o['align']}")
        self.lab("L_loop")
        for u in range(4):
            self.period(u)
        self.e("s_branch L_loop")
        for u in range(4):
            self.drain(u)
        self.epilogue()
        body = "\n".join(self.L)
        return (HEADER + f"; @launch grid=(256,1,1) block=(256,1,1) lds={LDS_TOTAL}\n"
                ".amdgcn_target \"amdgcn-amd-amdhsa--gfx950\"\n.text\n"
                f".globl {NAME}_kernel\n.p2align 8\n.type {NAME}_kernel,@function\n{NAME}_kernel:\n"
                + body + "\n"
                ".section .rodata,\"a\"\n.p2align 6\n"
                f".amdhsa_kernel {NAME}_kernel\n"
                "  .amdhsa_next_free_vgpr 448\n  .amdhsa_next_free_sgpr 102\n  .amdhsa_accum_offset 256\n"
                "  .amdhsa_group_segment_fixed_size 0\n  .amdhsa_kernarg_size 64\n  .amdhsa_user_sgpr_count 2\n"
                "  .amdhsa_user_sgpr_kernarg_segment_ptr 1\n  .amdhsa_system_sgpr_workgroup_id_x 1\n"
                ".end_amdhsa_kernel\n")


DEFAULT = dict(
    sm_start=23,
    vread_slots=[28, 29, 30, 31] + list(range(0, 12)),
    kread_slots=[16, 17, 19, 20, 22, 23, 25, 26],
    dma_slots=[3, 11, 19, 27],
    m0_slot=17, rl_slot=13, cnt_slot=29,
)

def parse_opts(args):
    o = dict(DEFAULT)
    for a in args:
        k, _, v = a.partition("=")
        if v == "":
            o[k] = True
        else:
            try:
                o[k] = eval(v)
            except Exception:
                o[k] = v
    return o

if __name__ == "__main__":
    out = sys.argv[1]
    o = parse_opts(sys.argv[2:])
    open(out, "w").write(Gen(o).build())
```

```python
import sys, struct, math

NAME = "standalone__paged_block_table_kv_pagedattention__prompt"

HEADER = """; Kernarg layout for this problem (64 bytes, ptrs only, base s[0:1]):
"""

def f32bits(x):
    return struct.unpack("<I", struct.pack("<f", x))[0]

S_W = 3; S_CL = 4; S_N = 5; S_REM = 6; S_T = 7; S_IDX = 8; S_END = 9
S_OFF = 10; S_T3 = 11; S_DMAB = 12; S_DMAV = 13; S_ROW = 14; S_HEAD = 15
S_PTR = 16
S_C = 32
S_T2 = 34; S_ZERO = 35
SRD_Q = 36; SRD_K = 40; SRD_V = 44; SRD_O = 48; SRD_BT = 52; SRD_D = 56
S_MASK = 60
STAMP_REG = [92, 96, 98, 100, 16, 18, 20, 22, 26, 28]
V_LANE = 2
V_S = 16; V_P = 80; V_NEGM = 112; V_Q = 128
V_KA = 192; V_VA = 196; V_DK = 204; V_DVV = 208; V_BT = 212; V_L = 213
V_OOFF = 217; V_G4 = 218; V_NINF = 219
V_T = 220
A_O = 0; A_K = 128; A_V = 192

NST = 3
LDS_V = NST * 16384
KV_BYTES = 132 * 65536
Q_BYTES = 16777216

def vr(b, n=1): return f"v{b}" if n == 1 else f"v[{b}:{b+n-1}]"
def ar(b, n=1): return f"a{b}" if n == 1 else f"a[{b}:{b+n-1}]"
def sr(b, n=1): return f"s{b}" if n == 1 else f"s[{b}:{b+n-1}]"
MF = "v_mfma_f32_16x16x32_bf16"


class Gen:
    def __init__(self, opt):
        self.o = opt
        self.L = []
        self.nst = 0
    def e(self, s): self.L.append("    " + s)
    def lab(self, s): self.L.append(s + ":")
    def c(self, s): self.L.append("    ; " + s)

    def mfma_qk(self, qb, kb, s, cinit=None):
        d = vr(V_S + 16*qb + 4*kb, 4)
        c = d if s > 0 else (cinit if cinit is not None else vr(V_NEGM + 4*qb, 4))
        return f"{MF} {d}, {ar(A_K+4*(4*kb+s),4)}, {vr(V_Q+16*qb+4*s,4)}, {c}"
    def mfma_pv(self, qb, db, ks):
        d = ar(A_O + 32*qb + 4*db, 4)
        return f"{MF} {d}, {ar(A_V+4*(2*db+ks),4)}, {vr(V_P+8*qb+4*ks,4)}, {d}"
    def kread(self, f, stage):
        kb, s = f // 4, f % 4
        return f"ds_read_b128 {ar(A_K+4*f,4)}, {vr(V_KA+s)} offset:{stage*16384+kb*4096}"
    def vread(self, i, stage):
        f, u = i // 2, i % 2
        db, ks = f // 2, f % 2
        return f"ds_read_b64_tr_b16 {ar(A_V+4*f+2*u,2)}, {vr(V_VA+db)} offset:{stage*16384+(32*ks+16*u)*256}"
    def dma(self, kind, i, soff):
        v, srd = (V_DK, SRD_K) if kind == 'K' else (V_DVV, SRD_V)
        return f"buffer_load_dwordx4 {vr(v+i)}, {sr(srd,4)}, {sr(soff)} offen" + (f" offset:{1024*i}" if i else "") + self.o.get('ld_flags', '') + " lds"
    def m0(self, kind, stage):
        return f"s_add_u32 m0, {sr(S_DMAB if kind == 'K' else S_DMAV)}, {stage*16384}"
    def sm_exp(self, qb, e):
        r = V_S + 16*qb + e
        return f"v_exp_f32 {vr(r)}, {vr(r)}"
    def sm_add(self, qb, e):
        return f"v_add_f32 {vr(V_L+qb)}, {vr(V_L+qb)}, {vr(V_S+16*qb+e)}"
    def sm_cvt(self, qb, e):
        r = V_S + 16*qb + e
        return f"v_cvt_pk_bf16_f32 {vr(V_P+8*qb+e//2)}, {vr(r-1)}, {vr(r)}"
    def stamp(self, k):
        if self.o.get('stamp'):
            self.e(f"s_memtime {sr(STAMP_REG[k],2)}")
            self.nst = max(self.nst, k+1)

    def prologue(self):
        e = self.e; o = self.o
        e("s_cmp_ge_u32 s2, 256")
        e("s_cbranch_scc1 L_end")
        e(f"s_load_dwordx16 {sr(S_PTR,16)}, s[0:1], 0")
        self.stamp(0)
        if o.get('stamp'):
            e("s_memrealtime s[94:95]")
        e("v_lshrrev_b32 v1, 6, v0")
        e(f"v_and_b32 {vr(V_LANE)}, 63, v0")
        e(f"v_readfirstlane_b32 {sr(S_W)}, v1")
        e(f"s_and_b32 {sr(S_T)}, s2, 7")
        e(f"s_lshl_b32 {sr(S_T)}, {sr(S_T)}, 1")
        e(f"s_bfe_u32 {sr(S_HEAD)}, s2, 0x10003")
        e(f"s_add_u32 {sr(S_HEAD)}, {sr(S_HEAD)}, {sr(S_T)}")
        e(f"s_lshr_b32 {sr(S_T)}, s2, 4")
        e(f"s_lshl_b32 {sr(S_ROW)}, {sr(S_HEAD)}, 4")
        e(f"s_add_u32 {sr(S_ROW)}, {sr(S_ROW)}, {sr(S_T)}")
        e(f"s_lshl_b32 {sr(S_ROW)}, {sr(S_ROW)}, 2")
        e(f"s_add_u32 {sr(S_ROW)}, {sr(S_ROW)}, {sr(S_W)}")
        e(f"s_lshl_b32 {sr(S_ROW)}, {sr(S_ROW)}, 14")
        e(f"s_lshl_b32 {sr(S_HEAD)}, {sr(S_HEAD)}, 8")
        e(f"s_lshl_b32 {sr(S_DMAB)}, {sr(S_W)}, 12")
        e(f"s_add_u32 {sr(S_DMAV)}, {sr(S_DMAB)}, {LDS_V}")
        e(f"v_lshrrev_b32 v3, 4, {vr(V_LANE)}")
        e(f"v_and_b32 v4, 15, {vr(V_LANE)}")
        e("v_lshlrev_b32 v5, 4, v3")
        e(f"v_lshl_add_u32 {vr(V_OOFF)}, v4, 8, v5")
        e(f"v_and_b32 v9, 31, {vr(V_LANE)}")
        e(f"s_lshl_b32 {sr(S_T2)}, {sr(S_W)}, 2")
        e(f"v_lshl_add_u32 v9, v9, 4, {sr(S_T2)}")
        e("s_waitcnt lgkmcnt(0)")
        self.stamp(1)
        e(f"s_load_dword {sr(S_CL)}, {sr(S_PTR+8,2)}, 0")
        def srd(b, p, nbytes):
            e(f"s_mov_b32 {sr(b)}, {sr(p)}")
            e(f"s_and_b32 {sr(b+1)}, {sr(p+1)}, 0xffff")
            e(f"s_mov_b32 {sr(b+2)}, {nbytes}")
            e(f"s_mov_b32 {sr(b+3)}, 0x20000")
        srd(SRD_BT, S_PTR+6, 512)
        e(f"buffer_load_dword {vr(V_BT)}, v9, {sr(SRD_BT,4)}, 0 offen")
        srd(SRD_Q, S_PTR+0, Q_BYTES)
        def qload(qb):
            if qb:
                e(f"s_add_u32 {sr(S_T2)}, {sr(S_ROW)}, {4096*qb}")
            for s in range(4):
                e(f"buffer_load_dwordx4 {vr(V_Q+16*qb+4*s,4)}, {vr(V_OOFF)}, {sr(SRD_Q,4)}, {sr(S_T2 if qb else S_ROW)} offen" + (f" offset:{64*s}" if s else "") + o.get('q_flags', ''))
        nq_early = o['nq_early']
        for qb in range(nq_early):
            qload(qb)
        srd(SRD_K, S_PTR+2, KV_BYTES)
        srd(SRD_V, S_PTR+4, KV_BYTES)
        srd(SRD_O, S_PTR+10, Q_BYTES)
        if o.get('stamp'):
            srd(SRD_D, S_PTR+14, 268435456)
        e("v_xor_b32 v5, v4, v3")
        e("v_lshlrev_b32 v5, 4, v5")
        e("v_lshl_add_u32 v5, v3, 12, v5")
        e("v_lshlrev_b32 v6, 1, v3")
        e("v_xor_b32 v6, v4, v6")
        e("v_lshlrev_b32 v6, 4, v6")
        e("v_lshl_add_u32 v6, v3, 12, v6")
        for i in range(4):
            if i == 0:
                e(f"v_mov_b32 {vr(V_DK)}, v5")
                e(f"v_mov_b32 {vr(V_DVV)}, v6")
            else:
                e(f"v_xor_b32 v7, {64*i}, v5")
                e(f"v_add_u32 {vr(V_DK+i)}, {15360*i}, v7")
                if i % 2:
                    e(f"v_xor_b32 v7, 0x80, v6")
                    e(f"v_add_u32 {vr(V_DVV+i)}, {15360*i}, v7")
                else:
                    e(f"v_add_u32 {vr(V_DVV+i)}, {15360*i}, v6")
        e("v_xor_b32 v5, v3, v4")
        e("v_lshlrev_b32 v5, 4, v5")
        e(f"v_lshl_add_u32 {vr(V_KA)}, v4, 8, v5")
        for s in range(1, 4):
            e(f"v_xor_b32 {vr(V_KA+s)}, {64*s}, {vr(V_KA)}")
        e(f"v_lshrrev_b32 v5, 2, {vr(V_LANE)}")
        e("v_and_b32 v6, 7, v5")
        e("v_lshlrev_b32 v6, 5, v6")
        e("v_lshl_add_u32 v6, v5, 8, v6")
        e("v_and_b32 v7, 3, v4")
        e("v_lshl_add_u32 v6, v7, 3, v6")
        e(f"v_add_u32 {vr(V_VA)}, {LDS_V}, v6")
        for db in range(1, 8):
            e(f"v_xor_b32 {vr(V_VA+db)}, {32*db}, {vr(V_VA)}")
        e(f"v_lshlrev_b32 {vr(V_G4)}, 2, v3")
        e(f"v_mov_b32 {vr(V_NINF)}, 0xff800000")
        c = (1.0/math.sqrt(128.0)) * math.log2(math.e)
        e(f"s_mov_b32 {sr(S_C)}, {hex(f32bits(c))}")
        e(f"s_mov_b32 {sr(S_C+1)}, {hex(f32bits(c))}")
        e("s_waitcnt lgkmcnt(0)")
        e(f"s_cmp_le_i32 {sr(S_CL)}, 0")
        e(f"s_cselect_b32 {sr(S_ZERO)}, 1, 0")
        e(f"s_cselect_b32 {sr(S_CL)}, 0x800, {sr(S_CL)}")
        e(f"s_cselect_b32 {sr(SRD_K+2)}, 0, {sr(SRD_K+2)}")
        e(f"s_min_u32 {sr(S_CL)}, {sr(S_CL)}, 0x800")
        e(f"s_add_u32 {sr(S_N)}, {sr(S_CL)}, 63")
        e(f"s_lshr_b32 {sr(S_N)}, {sr(S_N)}, 6")
        e(f"s_sub_u32 {sr(S_IDX)}, {sr(S_N)}, 1")
        e(f"s_lshl_b32 {sr(S_T2)}, {sr(S_IDX)}, 6")
        e(f"s_sub_u32 {sr(S_REM)}, {sr(S_CL)}, {sr(S_T2)}")
        e(f"s_add_u32 {sr(S_END)}, {sr(S_N)}, 2")
        e("v_lshlrev_b32 v9, 2, v9")
        e(f"v_cmp_gt_u32 vcc, {sr(S_CL)}, v9")
        e(f"v_sub_u32 v10, {sr(S_REM)}, {vr(V_G4)}")
        e(f"s_waitcnt vmcnt({4*nq_early})")
        self.stamp(2)
        e(f"v_cndmask_b32 {vr(V_BT)}, 0, {vr(V_BT)}, vcc")
        e(f"v_lshlrev_b32 {vr(V_BT)}, 16, {vr(V_BT)}")
        e(f"v_add_u32 {vr(V_BT)}, {sr(S_HEAD)}, {vr(V_BT)}")
        e("s_nop 0")
        T0, T1 = S_T, S_T3
        e(f"v_readlane_b32 {sr(T0)}, {vr(V_BT)}, {sr(S_IDX)}")
        e(f"v_readlane_b32 {sr(T1)}, {vr(V_BT)}, 0")
        e(f"v_readlane_b32 {sr(S_OFF)}, {vr(V_BT)}, 1")
        e(self.m0('K', 0))
        e(f"s_mov_b32 {sr(S_IDX)}, 3")
        e("s_nop 1")
        for i in range(4): e(self.dma('K', i, T0))
        for qb in range(nq_early, 4):
            qload(qb)
        e(self.m0('V', 0)); e("s_nop 0")
        for i in range(4): e(self.dma('V', i, T0))
        e(self.m0('K', 1)); e("s_nop 0")
        for i in range(4): e(self.dma('K', i, T1))
        e(self.m0('V', 1)); e("s_nop 0")
        for i in range(4): e(self.dma('V', i, T1))
        self.stamp(3)
        for i in range(32):
            e(f"v_mov_b32 {vr(V_P+i)}, 0")
        for i in range(4):
            e(f"v_mov_b32 {vr(V_L+i)}, 0")
            e(f"v_mov_b32 {vr(V_S+48+12+i)}, {vr(V_NINF)}")
        for i in range(8):
            e(f"v_mfma_f32_32x32x16_bf16 {ar(16*i,16)}, {vr(V_P,4)}, {vr(V_P,4)}, 0")
        for kb in range(4):
            for r in range(4):
                e(f"v_cmp_lt_i32 {sr(S_MASK+2*(4*kb+r),2)}, {16*kb+r}, v10")
        for qb in range(4):
            later = (4*(nq_early-1-qb) + 4 + 4*(4-nq_early) if qb < nq_early else 4*(3-qb)) + 12
            e(f"s_waitcnt vmcnt({later})")
            for s in range(4):
                TA = V_T + 8*(s % 2)
                for i in range(4):
                    q = V_Q + 16*qb + 4*s + i
                    e(f"v_lshlrev_b32 {vr(TA+2*i)}, 16, {vr(q)}")
                    e(f"v_and_b32 {vr(TA+2*i+1)}, 0xffff0000, {vr(q)}")
                for i in range(4):
                    e(f"v_pk_mul_f32 {vr(TA+2*i,2)}, {vr(TA+2*i,2)}, {sr(S_C,2)}")
                for i in range(4):
                    q = V_Q + 16*qb + 4*s + i
                    e(f"v_cvt_pk_bf16_f32 {vr(q)}, {vr(TA+2*i)}, {vr(TA+2*i+1)}")
        e(f"s_cmp_eq_u32 {sr(S_ZERO)}, 1")
        e("s_cbranch_scc1 L_zeroq")
        self.lab("L_zeroq_ret")
        self.stamp(4)
        e("s_waitcnt vmcnt(8)")
        e("s_barrier")
        e(self.m0('K', 2))
        for f in range(4): e(self.kread(f, 0))
        for i in range(4): e(self.dma('K', i, S_OFF))
        e(self.m0('V', 2)); e("s_nop 0")
        for i in range(4): e(self.dma('V', i, S_OFF))
        for kb in range(4):
            if kb:
                e(f"s_cmp_le_u32 {sr(S_REM)}, {16*kb}")
                e("s_cbranch_scc1 L_f1")
                for s in range(4): e(self.kread(4*kb+s, 0))
            e("s_waitcnt lgkmcnt(0)")
            for qb in range(4):
                for s in range(4):
                    e(self.mfma_qk(qb, kb, s, "0"))
        self.lab("L_f1")
        for i in range(12): e(self.vread(i, 0))
        M = V_T
        for kb in range(4):
            if kb:
                e(f"s_cmp_le_u32 {sr(S_REM)}, {16*kb}")
                e("s_cbranch_scc1 L_f2")
            for qb in range(4):
                S = V_S + 16*qb + 4*kb
                for r in range(4):
                    e(f"v_cndmask_b32 {vr(S+r)}, {vr(V_NINF)}, {vr(S+r)}, {sr(S_MASK+2*(4*kb+r),2)}")
                if kb == 0:
                    e(f"v_max3_f32 {vr(M+2*qb)}, {vr(S)}, {vr(S+1)}, {vr(S+2)}")
                    e(f"v_max_f32 {vr(M+2*qb)}, {vr(M+2*qb)}, {vr(S+3)}")
                else:
                    e(f"v_max3_f32 {vr(M+2*qb)}, {vr(M+2*qb)}, {vr(S)}, {vr(S+1)}")
                    e(f"v_max3_f32 {vr(M+2*qb)}, {vr(M+2*qb)}, {vr(S+2)}, {vr(S+3)}")
        self.lab("L_f2")
        e("s_waitcnt lgkmcnt(2)")
        for i in range(12, 22): e(self.vread(i, 0))
        for sw in ("v_permlane32_swap_b32", "v_permlane16_swap_b32"):
            for qb in range(4):
                e(f"v_mov_b32 {vr(M+2*qb+1)}, {vr(M+2*qb)}")
            e("s_nop 0")
            for qb in range(4):
                e(f"{sw} {vr(M+2*qb)}, {vr(M+2*qb+1)}")
            e("s_nop 0")
            for qb in range(4):
                e(f"v_max_f32 {vr(M+2*qb)}, {vr(M+2*qb)}, {vr(M+2*qb+1)}")
        e("s_waitcnt lgkmcnt(2)")
        for i in range(22, 32): e(self.vread(i, 0))
        e(f"v_readlane_b32 {sr(S_OFF)}, {vr(V_BT)}, 2")
        for qb in range(4):
            for r in range(4):
                e(f"v_sub_f32 {vr(V_NEGM+4*qb+r)}, 0, {vr(M+2*qb)}")
        for kb in range(4):
            if kb:
                e(f"s_cmp_le_u32 {sr(S_REM)}, {16*kb}")
                e("s_cbranch_scc1 L_f3")
            for qb in range(4):
                S = V_S + 16*qb + 4*kb
                for r in range(4):
                    e(f"v_sub_f32 {vr(S+r)}, {vr(S+r)}, {vr(M+2*qb)}")
                if kb == 3 and qb == 3:
                    continue
                for r in range(4):
                    e(self.sm_exp(qb, 4*kb+r))
                e("s_nop 0")
                for r in range(4):
                    e(self.sm_add(qb, 4*kb+r))
                    if r % 2: e(self.sm_cvt(qb, 4*kb+r))
        self.lab("L_f3")
        e("s_waitcnt lgkmcnt(0)")
        e("s_nop 0")
        for ks in range(2):
            if ks:
                e(f"s_cmp_le_u32 {sr(S_REM)}, 32")
                e("s_cbranch_scc1 L_f4")
            for qb in range(3):
                for db in range(8):
                    e(self.mfma_pv(qb, db, ks))
        self.lab("L_f4")
        e("s_waitcnt vmcnt(8)")
        e("s_barrier")
        for f in range(16):
            if f == 10: e("s_waitcnt lgkmcnt(6)")
            e(self.kread(f, 1))
        e(self.m0('K', 0)); e("s_nop 0")
        for j, (kind, i, sl) in enumerate(self.dma_plan()):
            if sl >= o['bar_slot']:
                e(self.dma(kind, i, S_OFF))
        state_v = [1 for (kind, i, sl) in self.dma_plan() if sl >= o['bar_slot'] and kind == 'V']
        assert not state_v
        self.stamp(5)
        if o.get('stamp'): e("s_memrealtime s[24:25]")
        e("s_waitcnt lgkmcnt(0)")
        e(f"s_cmp_eq_u32 {sr(S_N)}, 1")
        e("s_cbranch_scc1 L_drain")

    def dma_plan(self):
        d = self.o['dma_slots']
        return [('K', i, d[i]) for i in range(4)] + [('V', i, d[4+i]) for i in range(4)]

    def period(self, u):
        o = self.o
        st = o['sm_start']
        NS = 128
        first = [[] for _ in range(NS)]
        valu = [[] for _ in range(NS)]
        mf = [None]*NS
        for qb in range(4):
            for k in range(16):
                mf[32*qb + k] = self.mfma_qk(qb, k // 4, k % 4)
                mf[32*qb + 16 + k] = self.mfma_pv((qb + 3) % 4, k // 2, k % 2)
        if not o.get('no_valu'):
            for qb in range(4):
                for el in range(16):
                    k = (32*qb + st + 2*el) % NS
                    valu[k].append(self.sm_exp(qb, el))
                    k = (k + 1) % NS
                    valu[k].append(self.sm_add(qb, el))
                    if el % 2: valu[k].append(self.sm_cvt(qb, el))
        if not o.get('no_lds'):
            for i in range(32):
                first[o['vread0'] + i].append(self.vread(i, u))
            for f in range(16):
                first[o['kread0'] + f*o['kstride']].append(self.kread(f, (u+1) % NST))
        v0 = o['vread0']
        issued = min(32, 47 - v0)
        first[47].insert(0, f"s_waitcnt lgkmcnt({max(0, issued - 24)})")
        first[59].append("s_waitcnt lgkmcnt(0)")
        first[127].append("s_waitcnt lgkmcnt(0)")
        b = o['bar_slot']
        if not o.get('no_dma'):
            first[b-1].append("s_waitcnt vmcnt(8)")
        if not o.get('no_barrier'):
            first[b].append("s_barrier")
        if not o.get('no_dma'):
            for (kind, i, sl) in self.dma_plan():
                first[sl].append(self.dma(kind, i, S_OFF))
            first[o['m0k_slot']].append(self.m0('K', u))
            first[o['m0v_slot']].append(self.m0('V', (u + NST - 1) % NST))
            valu[o['rl_slot']].append(f"v_readlane_b32 {sr(S_OFF)}, {vr(V_BT)}, {sr(S_IDX)}")
        first[o['cnt_slot']].append(f"s_add_u32 {sr(S_IDX)}, {sr(S_IDX)}, 1")
        first[o['cnt_slot']+1].append(f"s_cmp_eq_u32 {sr(S_IDX)}, {sr(S_END)}")
        self.c(f"---- period, stage {u}")
        for k in range(NS):
            self.e(mf[k])
            for x in first[k]: self.e(x)
            for x in valu[k]: self.e(x)

    def drain(self):
        e = self.e
        st = self.o['sm_start']
        self.lab("L_drain")
        e0 = (128 - 96 - st + 1) // 2
        assert e0 == 12
        for el in range(e0, 16): e(self.sm_exp(3, el))
        e("s_nop 0")
        for el in range(e0, 16):
            e(self.sm_add(3, el))
            if el % 2: e(self.sm_cvt(3, el))
        e("s_nop 1")
        for k in range(16):
            e(self.mfma_pv(3, k // 2, k % 2))

    def epilogue(self):
        e = self.e; o = self.o
        self.stamp(6)
        if o.get('stamp'): e("s_memrealtime s[30:31]")
        T = V_T
        for sw in ("v_permlane32_swap_b32", "v_permlane16_swap_b32"):
            for qb in range(4):
                e(f"v_mov_b32 {vr(T+qb)}, {vr(V_L+qb)}")
            e("s_nop 0")
            for qb in range(4):
                e(f"{sw} {vr(V_L+qb)}, {vr(T+qb)}")
            e("s_nop 0")
            for qb in range(4):
                e(f"v_add_f32 {vr(V_L+qb)}, {vr(V_L+qb)}, {vr(T+qb)}")
        for qb in range(4):
            e(f"v_rcp_f32 {vr(T+2*qb)}, {vr(V_L+qb)}")
        e("s_nop 0")
        for qb in range(4):
            e(f"v_mov_b32 {vr(T+2*qb+1)}, {vr(T+2*qb)}")
        n = 0
        for qb in range(4):
            if qb:
                e(f"s_add_u32 {sr(S_ROW)}, {sr(S_ROW)}, 4096")
            for p in range(4):
                W = 16 + 16*(n % 4); n += 1
                for i in range(8):
                    e(f"v_accvgpr_read_b32 {vr(W+i)}, {ar(A_O+32*qb+8*p+i)}")
                for i in range(4):
                    e(f"v_pk_mul_f32 {vr(W+2*i,2)}, {vr(W+2*i,2)}, {vr(T+2*qb,2)}")
                for i in range(4):
                    e(f"v_cvt_pk_bf16_f32 {vr(W+8+i)}, {vr(W+2*i)}, {vr(W+2*i+1)}")
                e("s_nop 0")
                e(f"v_permlane32_swap_b32 {vr(W+8)}, {vr(W+10)}")
                e(f"v_permlane32_swap_b32 {vr(W+9)}, {vr(W+11)}")
                e("s_nop 0")
                e(f"v_permlane16_swap_b32 {vr(W+8)}, {vr(W+10)}")
                e(f"v_permlane16_swap_b32 {vr(W+9)}, {vr(W+11)}")
                e(f"buffer_store_dwordx4 {vr(W+8,4)}, {vr(V_OOFF)}, {sr(SRD_O,4)}, {sr(S_ROW)} offen" + (f" offset:{64*p}" if p else "") + o.get('st_flags', ''))
        if o.get('stamp'):
            self.stamp(7)
            e("s_waitcnt vmcnt(0)")
            e("s_memtime s[62:63]")
            e("s_memrealtime s[64:65]")
            e("s_getreg_b32 s66, hwreg(HW_REG_XCC_ID)")
            e("s_getreg_b32 s67, hwreg(HW_REG_HW_ID)")
            e("s_waitcnt lgkmcnt(0)")
            e("v_mov_b32 v16, 0")
            n = self.nst
            for k in range(n):
                e(f"v_writelane_b32 v16, {sr(STAMP_REG[k])}, {k}")
            e(f"v_writelane_b32 v16, s62, {n}")
            e(f"v_writelane_b32 v16, s64, {n+1}")
            e(f"v_writelane_b32 v16, s66, {n+2}")
            e(f"v_writelane_b32 v16, s67, {n+3}")
            e(f"v_writelane_b32 v16, s94, {n+4}")
            e(f"v_writelane_b32 v16, s24, {n+5}")
            e(f"v_writelane_b32 v16, s30, {n+6}")
            e(f"s_lshl_b32 {sr(S_T)}, s2, 2")
            e(f"s_add_u32 {sr(S_T)}, {sr(S_T)}, {sr(S_W)}")
            e(f"s_lshl_b32 {sr(S_T)}, {sr(S_T)}, 8")
            e(f"v_lshlrev_b32 v17, 2, {vr(V_LANE)}")
            e(f"buffer_store_dword v16, v17, {sr(SRD_D,4)}, {sr(S_T)} offen")
        self.lab("L_end")
        e("s_endpgm")
        self.lab("L_zeroq")
        for i in range(64):
            e(f"v_mov_b32 {vr(V_Q+i)}, 0")
        e("s_nop 1")
        e("s_branch L_zeroq_ret")

    def build(self):
        self.prologue()
        if self.o.get('align'):
            self.L.append(f".p2align {self.o['align']}")
        self.lab("L_loop")
        for j in range(NST):
            self.period((1 + j) % NST)
            if j < NST - 1:
                self.e("s_cbranch_scc1 L_drain")
            else:
                self.e("s_cbranch_scc0 L_loop")
        self.drain()
        self.epilogue()
        body = "\n".join(self.L)
        return (HEADER + f"; @launch grid=(256,1,1) block=(256,1,1) lds={2*LDS_V}\n"
                ".amdgcn_target \"amdgcn-amd-amdhsa--gfx950\"\n.text\n"
                f".globl {NAME}_kernel\n.p2align 8\n.type {NAME}_kernel,@function\n{NAME}_kernel:\n"
                + body + "\n"
                ".section .rodata,\"a\"\n.p2align 6\n"
                f".amdhsa_kernel {NAME}_kernel\n"
                "  .amdhsa_next_free_vgpr 512\n  .amdhsa_next_free_sgpr 102\n  .amdhsa_accum_offset 256\n"
                "  .amdhsa_group_segment_fixed_size 0\n  .amdhsa_kernarg_size 64\n  .amdhsa_user_sgpr_count 2\n"
                "  .amdhsa_user_sgpr_kernarg_segment_ptr 1\n  .amdhsa_system_sgpr_workgroup_id_x 1\n"
                ".end_amdhsa_kernel\n")


DEFAULT = dict(
    sm_start=8, vread0=17, kread0=97, kstride=1,
    bar_slot=92, dma_slots=[114, 122, 4, 12, 52, 64, 72, 80],
    m0k_slot=93, m0v_slot=14, rl_slot=89, cnt_slot=94, nq_early=2,
)

def parse_opts(args):
    o = dict(DEFAULT)
    for a in args:
        k, _, v = a.partition("=")
        if v == "": o[k] = True
        else:
            try: o[k] = eval(v)
            except Exception: o[k] = v
    return o

if __name__ == "__main__":
    o = parse_opts(sys.argv[2:])
    open(sys.argv[1], "w").write(Gen(o).build())
```

```python
import sys, struct, math

NAME = "standalone__paged_block_table_kv_pagedattention__prompt"

HEADER = """; Kernarg layout for this problem (64 bytes, ptrs only, base s[0:1]):
"""

def f32bits(x):
    return struct.unpack("<I", struct.pack("<f", x))[0]

S_W = 3; S_CL = 4; S_N = 5; S_REM = 6; S_T = 7; S_IDX = 8; S_END = 9
S_OFF = 10; S_T3 = 11; S_DMAB = 12; S_DMAV = 13; S_ROW = 14; S_HEAD = 15
S_PTR = 16
S_C = 32
S_T2 = 34; S_ZERO = 35
SRD_Q = 36; SRD_K = 40; SRD_V = 44; SRD_O = 48; SRD_BT = 52; SRD_D = 56
S_MASK = 60
STAMP_REG = [92, 96, 98, 100, 16, 18, 20, 22, 26, 28]
V_LANE = 2
V_S = 16; V_P = 80; V_NEGM = 112; V_Q = 128
V_KA = 192; V_VA = 196; V_DK = 204; V_DVV = 208; V_BT = 212; V_L = 213
V_OOFF = 217; V_G4 = 218; V_NINF = 219
V_T = 220
A_O = 0; A_K = 128; A_V = 192

NST = 3
LDS_V = NST * 16384
KV_BYTES = 132 * 65536
Q_BYTES = 16777216

def vr(b, n=1): return f"v{b}" if n == 1 else f"v[{b}:{b+n-1}]"
def ar(b, n=1): return f"a{b}" if n == 1 else f"a[{b}:{b+n-1}]"
def sr(b, n=1): return f"s{b}" if n == 1 else f"s[{b}:{b+n-1}]"
MF = "v_mfma_f32_16x16x32_bf16"


class Gen:
    def __init__(self, opt):
        self.o = opt
        self.L = []
        self.nst = 0
    def e(self, s): self.L.append("    " + s)
    def lab(self, s): self.L.append(s + ":")
    def c(self, s): self.L.append("    ; " + s)

    def mfma_qk(self, qb, kb, s, cinit=None):
        d = vr(V_S + 16*qb + 4*kb, 4)
        c = d if s > 0 else (cinit if cinit is not None else vr(V_NEGM + 4*qb, 4))
        return f"{MF} {d}, {ar(A_K+4*(4*kb+s),4)}, {vr(V_Q+16*qb+4*s,4)}, {c}"
    def mfma_pv(self, qb, db, ks):
        d = ar(A_O + 32*qb + 4*db, 4)
        return f"{MF} {d}, {ar(A_V+4*(2*db+ks),4)}, {vr(V_P+8*qb+4*ks,4)}, {d}"
    def kread(self, f, stage):
        kb, s = f // 4, f % 4
        return f"ds_read_b128 {ar(A_K+4*f,4)}, {vr(V_KA+s)} offset:{stage*16384+kb*4096}"
    def vread(self, i, stage):
        f, u = i // 2, i % 2
        db, ks = f // 2, f % 2
        return f"ds_read_b64_tr_b16 {ar(A_V+4*f+2*u,2)}, {vr(V_VA+db)} offset:{stage*16384+(32*ks+16*u)*256}"
    def dma(self, kind, i, soff):
        v, srd = (V_DK, SRD_K) if kind == 'K' else (V_DVV, SRD_V)
        return f"buffer_load_dwordx4 {vr(v+i)}, {sr(srd,4)}, {sr(soff)} offen" + (f" offset:{1024*i}" if i else "") + self.o.get('ld_flags', '') + " lds"
    def m0(self, kind, stage):
        return f"s_add_u32 m0, {sr(S_DMAB if kind == 'K' else S_DMAV)}, {stage*16384}"
    def sm_exp(self, qb, e):
        r = V_S + 16*qb + e
        return f"v_exp_f32 {vr(r)}, {vr(r)}"
    def sm_add(self, qb, e):
        return f"v_add_f32 {vr(V_L+qb)}, {vr(V_L+qb)}, {vr(V_S+16*qb+e)}"
    def sm_cvt(self, qb, e):
        r = V_S + 16*qb + e
        return f"v_cvt_pk_bf16_f32 {vr(V_P+8*qb+e//2)}, {vr(r-1)}, {vr(r)}"
    def stamp(self, k):
        if self.o.get('stamp'):
            self.e(f"s_memtime {sr(STAMP_REG[k],2)}")
            self.nst = max(self.nst, k+1)

    def prologue(self):
        e = self.e; o = self.o
        e("s_cmp_ge_u32 s2, 256")
        e("s_cbranch_scc1 L_end")
        e(f"s_load_dwordx16 {sr(S_PTR,16)}, s[0:1], 0")
        self.stamp(0)
        if o.get('stamp'):
            e("s_memrealtime s[94:95]")
        e("v_lshrrev_b32 v1, 6, v0")
        e(f"v_and_b32 {vr(V_LANE)}, 63, v0")
        e(f"v_readfirstlane_b32 {sr(S_W)}, v1")
        e(f"s_and_b32 {sr(S_T)}, s2, 7")
        e(f"s_lshl_b32 {sr(S_T)}, {sr(S_T)}, 1")
        e(f"s_bfe_u32 {sr(S_HEAD)}, s2, 0x10003")
        e(f"s_add_u32 {sr(S_HEAD)}, {sr(S_HEAD)}, {sr(S_T)}")
        e(f"s_lshr_b32 {sr(S_T)}, s2, 4")
        e(f"s_lshl_b32 {sr(S_ROW)}, {sr(S_HEAD)}, 4")
        e(f"s_add_u32 {sr(S_ROW)}, {sr(S_ROW)}, {sr(S_T)}")
        e(f"s_lshl_b32 {sr(S_ROW)}, {sr(S_ROW)}, 2")
        e(f"s_add_u32 {sr(S_ROW)}, {sr(S_ROW)}, {sr(S_W)}")
        e(f"s_lshl_b32 {sr(S_ROW)}, {sr(S_ROW)}, 14")
        e(f"s_lshl_b32 {sr(S_HEAD)}, {sr(S_HEAD)}, 8")
        e(f"s_lshl_b32 {sr(S_DMAB)}, {sr(S_W)}, 12")
        e(f"s_add_u32 {sr(S_DMAV)}, {sr(S_DMAB)}, {LDS_V}")
        e(f"v_lshrrev_b32 v3, 4, {vr(V_LANE)}")
        e(f"v_and_b32 v4, 15, {vr(V_LANE)}")
        e("v_lshlrev_b32 v5, 4, v3")
        e(f"v_lshl_add_u32 {vr(V_OOFF)}, v4, 8, v5")
        e(f"v_and_b32 v9, 31, {vr(V_LANE)}")
        e(f"s_lshl_b32 {sr(S_T2)}, {sr(S_W)}, 2")
        e(f"v_lshl_add_u32 v9, v9, 4, {sr(S_T2)}")
        e("s_waitcnt lgkmcnt(0)")
        self.stamp(1)
        e(f"s_load_dword {sr(S_CL)}, {sr(S_PTR+8,2)}, 0")
        def srd(b, p, nbytes):
            e(f"s_mov_b32 {sr(b)}, {sr(p)}")
            e(f"s_and_b32 {sr(b+1)}, {sr(p+1)}, 0xffff")
            e(f"s_mov_b32 {sr(b+2)}, {nbytes}")
            e(f"s_mov_b32 {sr(b+3)}, 0x20000")
        srd(SRD_BT, S_PTR+6, 512)
        e(f"buffer_load_dword {vr(V_BT)}, v9, {sr(SRD_BT,4)}, 0 offen")
        srd(SRD_Q, S_PTR+0, Q_BYTES)
        def qload(qb):
            if qb:
                e(f"s_add_u32 {sr(S_T2)}, {sr(S_ROW)}, {4096*qb}")
            for s in range(4):
                e(f"buffer_load_dwordx4 {vr(V_Q+16*qb+4*s,4)}, {vr(V_OOFF)}, {sr(SRD_Q,4)}, {sr(S_T2 if qb else S_ROW)} offen" + (f" offset:{64*s}" if s else "") + o.get('q_flags', ''))
        nq_early = o['nq_early']
        for qb in range(nq_early):
            qload(qb)
        srd(SRD_K, S_PTR+2, KV_BYTES)
        srd(SRD_V, S_PTR+4, KV_BYTES)
        srd(SRD_O, S_PTR+10, Q_BYTES)
        if o.get('dbg'):
            srd(SRD_D, S_PTR+12, 256)
        elif o.get('stamp'):
            srd(SRD_D, S_PTR+14, 268435456)
        e("v_xor_b32 v5, v4, v3")
        e("v_lshlrev_b32 v5, 4, v5")
        e("v_lshl_add_u32 v5, v3, 12, v5")
        e("v_lshlrev_b32 v6, 1, v3")
        e("v_xor_b32 v6, v4, v6")
        e("v_lshlrev_b32 v6, 4, v6")
        e("v_lshl_add_u32 v6, v3, 12, v6")
        for i in range(4):
            if i == 0:
                e(f"v_mov_b32 {vr(V_DK)}, v5")
                e(f"v_mov_b32 {vr(V_DVV)}, v6")
            else:
                e(f"v_xor_b32 v7, {64*i}, v5")
                e(f"v_add_u32 {vr(V_DK+i)}, {15360*i}, v7")
                if i % 2:
                    e(f"v_xor_b32 v7, 0x80, v6")
                    e(f"v_add_u32 {vr(V_DVV+i)}, {15360*i}, v7")
                else:
                    e(f"v_add_u32 {vr(V_DVV+i)}, {15360*i}, v6")
        e("v_xor_b32 v5, v3, v4")
        e("v_lshlrev_b32 v5, 4, v5")
        e(f"v_lshl_add_u32 {vr(V_KA)}, v4, 8, v5")
        for s in range(1, 4):
            e(f"v_xor_b32 {vr(V_KA+s)}, {64*s}, {vr(V_KA)}")
        e(f"v_lshrrev_b32 v5, 2, {vr(V_LANE)}")
        e("v_and_b32 v6, 7, v5")
        e("v_lshlrev_b32 v6, 5, v6")
        e("v_lshl_add_u32 v6, v5, 8, v6")
        e("v_and_b32 v7, 3, v4")
        e("v_lshl_add_u32 v6, v7, 3, v6")
        e(f"v_add_u32 {vr(V_VA)}, {LDS_V}, v6")
        for db in range(1, 8):
            e(f"v_xor_b32 {vr(V_VA+db)}, {32*db}, {vr(V_VA)}")
        e(f"v_lshlrev_b32 {vr(V_G4)}, 2, v3")
        e(f"v_mov_b32 {vr(V_NINF)}, 0xff800000")
        c = (1.0/math.sqrt(128.0)) * math.log2(math.e)
        e(f"s_mov_b32 {sr(S_C)}, {hex(f32bits(c))}")
        e(f"s_mov_b32 {sr(S_C+1)}, {hex(f32bits(c))}")
        e("s_waitcnt lgkmcnt(0)")
        e(f"s_cmp_le_i32 {sr(S_CL)}, 0")
        e(f"s_cselect_b32 {sr(S_ZERO)}, 1, 0")
        e(f"s_cselect_b32 {sr(S_CL)}, 0x800, {sr(S_CL)}")
        e(f"s_cselect_b32 {sr(SRD_K+2)}, 0, {sr(SRD_K+2)}")
        e(f"s_min_u32 {sr(S_CL)}, {sr(S_CL)}, 0x800")
        e(f"s_add_u32 {sr(S_N)}, {sr(S_CL)}, 63")
        e(f"s_lshr_b32 {sr(S_N)}, {sr(S_N)}, 6")
        e(f"s_sub_u32 {sr(S_IDX)}, {sr(S_N)}, 1")
        e(f"s_lshl_b32 {sr(S_T2)}, {sr(S_IDX)}, 6")
        e(f"s_sub_u32 {sr(S_REM)}, {sr(S_CL)}, {sr(S_T2)}")
        e(f"s_add_u32 {sr(S_END)}, {sr(S_N)}, 2")
        e("v_lshlrev_b32 v9, 2, v9")
        e(f"v_cmp_gt_u32 vcc, {sr(S_CL)}, v9")
        e(f"v_sub_u32 v10, {sr(S_REM)}, {vr(V_G4)}")
        e(f"s_waitcnt vmcnt({4*nq_early})")
        self.stamp(2)
        e(f"v_cndmask_b32 {vr(V_BT)}, 0, {vr(V_BT)}, vcc")
        e(f"v_lshlrev_b32 {vr(V_BT)}, 16, {vr(V_BT)}")
        e(f"v_add_u32 {vr(V_BT)}, {sr(S_HEAD)}, {vr(V_BT)}")
        e("s_nop 0")
        T0, T1 = S_T, S_T3
        e(f"v_readlane_b32 {sr(T0)}, {vr(V_BT)}, {sr(S_IDX)}")
        e(f"v_readlane_b32 {sr(T1)}, {vr(V_BT)}, 0")
        e(f"v_readlane_b32 {sr(S_OFF)}, {vr(V_BT)}, 1")
        e(self.m0('K', 0))
        e(f"s_mov_b32 {sr(S_IDX)}, 3")
        e("s_nop 1")
        for i in range(4): e(self.dma('K', i, T0))
        for qb in range(nq_early, 4):
            qload(qb)
        e(self.m0('V', 0)); e("s_nop 0")
        for i in range(4): e(self.dma('V', i, T0))
        e(self.m0('K', 1)); e("s_nop 0")
        for i in range(4): e(self.dma('K', i, T1))
        e(self.m0('V', 1)); e("s_nop 0")
        for i in range(4): e(self.dma('V', i, T1))
        self.stamp(3)
        for i in range(32):
            e(f"v_mov_b32 {vr(V_P+i)}, 0")
        for i in range(4):
            e(f"v_mov_b32 {vr(V_L+i)}, 0")
            e(f"v_mov_b32 {vr(V_S+48+12+i)}, {vr(V_NINF)}")
        for i in range(8):
            e(f"v_mfma_f32_32x32x16_bf16 {ar(16*i,16)}, {vr(V_P,4)}, {vr(V_P,4)}, 0")
        for kb in range(4):
            for r in range(4):
                e(f"v_cmp_lt_i32 {sr(S_MASK+2*(4*kb+r),2)}, {16*kb+r}, v10")
        for qb in range(4):
            later = (4*(nq_early-1-qb) + 4 + 4*(4-nq_early) if qb < nq_early else 4*(3-qb)) + 12
            e(f"s_waitcnt vmcnt({later})")
            for s in range(4):
                TA = V_T + 8*(s % 2)
                for i in range(4):
                    q = V_Q + 16*qb + 4*s + i
                    e(f"v_lshlrev_b32 {vr(TA+2*i)}, 16, {vr(q)}")
                    e(f"v_and_b32 {vr(TA+2*i+1)}, 0xffff0000, {vr(q)}")
                for i in range(4):
                    e(f"v_pk_mul_f32 {vr(TA+2*i,2)}, {vr(TA+2*i,2)}, {sr(S_C,2)}")
                for i in range(4):
                    q = V_Q + 16*qb + 4*s + i
                    e(f"v_cvt_pk_bf16_f32 {vr(q)}, {vr(TA+2*i)}, {vr(TA+2*i+1)}")
        e(f"s_cmp_eq_u32 {sr(S_ZERO)}, 1")
        e("s_cbranch_scc1 L_zeroq")
        self.lab("L_zeroq_ret")
        self.stamp(4)
        e("s_waitcnt vmcnt(8)")
        e("s_barrier")
        e(self.m0('K', 2))
        for f in range(4): e(self.kread(f, 0))
        for i in range(4): e(self.dma('K', i, S_OFF))
        e(self.m0('V', 2)); e("s_nop 0")
        for i in range(4): e(self.dma('V', i, S_OFF))
        for kb in range(4):
            if kb:
                e(f"s_cmp_le_u32 {sr(S_REM)}, {16*kb}")
                e("s_cbranch_scc1 L_f1")
                for s in range(4): e(self.kread(4*kb+s, 0))
            e("s_waitcnt lgkmcnt(0)")
            for qb in range(4):
                for s in range(4):
                    e(self.mfma_qk(qb, kb, s, "0"))
        self.lab("L_f1")
        for i in range(12): e(self.vread(i, 0))
        M = V_T
        for kb in range(4):
            if kb:
                e(f"s_cmp_le_u32 {sr(S_REM)}, {16*kb}")
                e("s_cbranch_scc1 L_f2")
            for qb in range(4):
                S = V_S + 16*qb + 4*kb
                for r in range(4):
                    e(f"v_cndmask_b32 {vr(S+r)}, {vr(V_NINF)}, {vr(S+r)}, {sr(S_MASK+2*(4*kb+r),2)}")
                if kb == 0:
                    e(f"v_max3_f32 {vr(M+2*qb)}, {vr(S)}, {vr(S+1)}, {vr(S+2)}")
                    e(f"v_max_f32 {vr(M+2*qb)}, {vr(M+2*qb)}, {vr(S+3)}")
                else:
                    e(f"v_max3_f32 {vr(M+2*qb)}, {vr(M+2*qb)}, {vr(S)}, {vr(S+1)}")
                    e(f"v_max3_f32 {vr(M+2*qb)}, {vr(M+2*qb)}, {vr(S+2)}, {vr(S+3)}")
        self.lab("L_f2")
        e("s_waitcnt lgkmcnt(2)")
        for i in range(12, 22): e(self.vread(i, 0))
        for sw in ("v_permlane32_swap_b32", "v_permlane16_swap_b32"):
            for qb in range(4):
                e(f"v_mov_b32 {vr(M+2*qb+1)}, {vr(M+2*qb)}")
            e("s_nop 0")
            for qb in range(4):
                e(f"{sw} {vr(M+2*qb)}, {vr(M+2*qb+1)}")
            e("s_nop 0")
            for qb in range(4):
                e(f"v_max_f32 {vr(M+2*qb)}, {vr(M+2*qb)}, {vr(M+2*qb+1)}")
        e("s_waitcnt lgkmcnt(2)")
        for i in range(22, 32): e(self.vread(i, 0))
        e(f"v_readlane_b32 {sr(S_OFF)}, {vr(V_BT)}, 2")
        for qb in range(4):
            for r in range(4):
                e(f"v_sub_f32 {vr(V_NEGM+4*qb+r)}, 0, {vr(M+2*qb)}")
        for kb in range(4):
            if kb:
                e(f"s_cmp_le_u32 {sr(S_REM)}, {16*kb}")
                e("s_cbranch_scc1 L_f3")
            for qb in range(4):
                S = V_S + 16*qb + 4*kb
                for r in range(4):
                    e(f"v_sub_f32 {vr(S+r)}, {vr(S+r)}, {vr(M+2*qb)}")
                if kb == 3 and qb == 3:
                    continue
                for r in range(4):
                    e(self.sm_exp(qb, 4*kb+r))
                e("s_nop 0")
                for r in range(4):
                    e(self.sm_add(qb, 4*kb+r))
                    if r % 2: e(self.sm_cvt(qb, 4*kb+r))
        self.lab("L_f3")
        e("s_waitcnt lgkmcnt(0)")
        e("s_nop 0")
        for ks in range(2):
            if ks:
                e(f"s_cmp_le_u32 {sr(S_REM)}, 32")
                e("s_cbranch_scc1 L_f4")
            for qb in range(3):
                for db in range(8):
                    e(self.mfma_pv(qb, db, ks))
        self.lab("L_f4")
        e("s_waitcnt vmcnt(8)")
        e("s_barrier")
        for f in range(16):
            if f == 10: e("s_waitcnt lgkmcnt(6)")
            e(self.kread(f, 1))
        e(self.m0('K', 0)); e("s_nop 0")
        for j, (kind, i, sl) in enumerate(self.dma_plan()):
            if sl >= o['bar_slot']:
                e(self.dma(kind, i, S_OFF))
        state_v = [1 for (kind, i, sl) in self.dma_plan() if sl >= o['bar_slot'] and kind == 'V']
        assert not state_v
        self.stamp(5)
        if o.get('stamp'): e("s_memrealtime s[24:25]")
        e("s_waitcnt lgkmcnt(0)")
        e(f"s_cmp_eq_u32 {sr(S_N)}, 1")
        e("s_cbranch_scc1 L_drain")

    def dma_plan(self):
        d = self.o['dma_slots']
        return [('K', i, d[i]) for i in range(4)] + [('V', i, d[4+i]) for i in range(4)]

    def period(self, u):
        o = self.o
        st = o['sm_start']
        NS = 128
        first = [[] for _ in range(NS)]
        valu = [[] for _ in range(NS)]
        mf = [None]*NS
        for qb in range(4):
            for k in range(16):
                mf[32*qb + k] = self.mfma_qk(qb, k // 4, k % 4)
                mf[32*qb + 16 + k] = self.mfma_pv((qb + 3) % 4, k // 2, k % 2)
        if not o.get('no_valu'):
            for qb in range(4):
                for el in range(16):
                    k = (32*qb + st + 2*el) % NS
                    valu[k].append(self.sm_exp(qb, el))
                    k = (k + 1) % NS
                    valu[k].append(self.sm_add(qb, el))
                    if el % 2: valu[k].append(self.sm_cvt(qb, el))
        if not o.get('no_lds'):
            for i in range(32):
                first[o['vread0'] + i].append(self.vread(i, u))
            for f in range(16):
                first[o['kread0'] + f*o['kstride']].append(self.kread(f, (u+1) % NST))
        v0 = o['vread0']
        issued = min(32, 47 - v0)
        first[47].insert(0, f"s_waitcnt lgkmcnt({max(0, issued - 24)})")
        first[59].append("s_waitcnt lgkmcnt(0)")
        first[127].append("s_waitcnt lgkmcnt(0)")
        b = o['bar_slot']
        if not o.get('no_dma'):
            first[b-1].append("s_waitcnt vmcnt(8)")
        if not o.get('no_barrier'):
            first[b].append("s_barrier")
        if not o.get('no_dma'):
            for (kind, i, sl) in self.dma_plan():
                first[sl].append(self.dma(kind, i, S_OFF))
            first[o['m0k_slot']].append(self.m0('K', u))
            first[o['m0v_slot']].append(self.m0('V', (u + NST - 1) % NST))
            valu[o['rl_slot']].append(f"v_readlane_b32 {sr(S_OFF)}, {vr(V_BT)}, {sr(S_IDX)}")
        first[o['cnt_slot']].append(f"s_add_u32 {sr(S_IDX)}, {sr(S_IDX)}, 1")
        first[o['cnt_slot']+1].append(f"s_cmp_eq_u32 {sr(S_IDX)}, {sr(S_END)}")
        self.c(f"---- period, stage {u}")
        for k in range(NS):
            self.e(mf[k])
            for x in first[k]: self.e(x)
            for x in valu[k]: self.e(x)

    def drain(self):
        e = self.e
        st = self.o['sm_start']
        self.lab("L_drain")
        e0 = (128 - 96 - st + 1) // 2
        assert e0 == 12
        for el in range(e0, 16): e(self.sm_exp(3, el))
        e("s_nop 0")
        for el in range(e0, 16):
            e(self.sm_add(3, el))
            if el % 2: e(self.sm_cvt(3, el))
        e("s_nop 1")
        for k in range(16):
            e(self.mfma_pv(3, k // 2, k % 2))

    def epilogue(self):
        e = self.e; o = self.o
        self.stamp(6)
        if o.get('stamp'): e("s_memrealtime s[30:31]")
        T = V_T
        for sw in ("v_permlane32_swap_b32", "v_permlane16_swap_b32"):
            for qb in range(4):
                e(f"v_mov_b32 {vr(T+qb)}, {vr(V_L+qb)}")
            e("s_nop 0")
            for qb in range(4):
                e(f"{sw} {vr(V_L+qb)}, {vr(T+qb)}")
            e("s_nop 0")
            for qb in range(4):
                e(f"v_add_f32 {vr(V_L+qb)}, {vr(V_L+qb)}, {vr(T+qb)}")
        for qb in range(4):
            e(f"v_rcp_f32 {vr(T+2*qb)}, {vr(V_L+qb)}")
        e("s_nop 0")
        for qb in range(4):
            e(f"v_mov_b32 {vr(T+2*qb+1)}, {vr(T+2*qb)}")
        n = 0
        for qb in range(4):
            if qb:
                e(f"s_add_u32 {sr(S_ROW)}, {sr(S_ROW)}, 4096")
            for p in range(4):
                W = 16 + 16*(n % 4); n += 1
                for i in range(8):
                    e(f"v_accvgpr_read_b32 {vr(W+i)}, {ar(A_O+32*qb+8*p+i)}")
                for i in range(4):
                    e(f"v_pk_mul_f32 {vr(W+2*i,2)}, {vr(W+2*i,2)}, {vr(T+2*qb,2)}")
                for i in range(4):
                    e(f"v_cvt_pk_bf16_f32 {vr(W+8+i)}, {vr(W+2*i)}, {vr(W+2*i+1)}")
                e("s_nop 0")
                e(f"v_permlane32_swap_b32 {vr(W+8)}, {vr(W+10)}")
                e(f"v_permlane32_swap_b32 {vr(W+9)}, {vr(W+11)}")
                e("s_nop 0")
                e(f"v_permlane16_swap_b32 {vr(W+8)}, {vr(W+10)}")
                e(f"v_permlane16_swap_b32 {vr(W+9)}, {vr(W+11)}")
                e(f"buffer_store_dwordx4 {vr(W+8,4)}, {vr(V_OOFF)}, {sr(SRD_O,4)}, {sr(S_ROW)} offen" + (f" offset:{64*p}" if p else "") + o.get('st_flags', ''))
        if o.get('stamp'):
            self.stamp(7)
            e("s_waitcnt vmcnt(0)")
            e("s_memtime s[62:63]")
            e("s_memrealtime s[64:65]")
            e("s_getreg_b32 s66, hwreg(HW_REG_XCC_ID)")
            e("s_getreg_b32 s67, hwreg(HW_REG_HW_ID)")
            e("s_waitcnt lgkmcnt(0)")
            e("v_mov_b32 v16, 0")
            n = self.nst
            for k in range(n):
                e(f"v_writelane_b32 v16, {sr(STAMP_REG[k])}, {k}")
            e(f"v_writelane_b32 v16, s62, {n}")
            e(f"v_writelane_b32 v16, s64, {n+1}")
            e(f"v_writelane_b32 v16, s66, {n+2}")
            e(f"v_writelane_b32 v16, s67, {n+3}")
            e(f"v_writelane_b32 v16, s94, {n+4}")
            e(f"v_writelane_b32 v16, s24, {n+5}")
            e(f"v_writelane_b32 v16, s30, {n+6}")
            e(f"s_lshl_b32 {sr(S_T)}, s2, 2")
            e(f"s_add_u32 {sr(S_T)}, {sr(S_T)}, {sr(S_W)}")
            e(f"s_lshl_b32 {sr(S_T)}, {sr(S_T)}, 8")
            e(f"v_lshlrev_b32 v17, 2, {vr(V_LANE)}")
            if not o.get('dbg'):
                e(f"buffer_store_dword v16, v17, {sr(SRD_D,4)}, {sr(S_T)} offen")
            else:
                e("v_mov_b32 v16, 0")
                for k, (r, inv) in enumerate([(94, 1), (94, 0), (24, 1), (24, 0), (30, 1), (30, 0), (64, 1), (64, 0)]):
                    if inv:
                        e(f"s_not_b32 s70, s{r}")
                        e(f"v_writelane_b32 v16, s70, {k}")
                    else:
                        e(f"v_writelane_b32 v16, s{r}, {k}")
                for k in range(7):
                    e(f"s_sub_u32 s70, s{STAMP_REG[k+1]}, s{STAMP_REG[k]}")
                    e(f"v_writelane_b32 v16, s70, {8+k}")
                e(f"buffer_atomic_umax v16, v17, {sr(SRD_D,4)}, 0 offen")
        self.lab("L_end")
        e("s_endpgm")
        self.lab("L_zeroq")
        for i in range(64):
            e(f"v_mov_b32 {vr(V_Q+i)}, 0")
        e("s_nop 1")
        e("s_branch L_zeroq_ret")

    def build(self):
        self.prologue()
        if self.o.get('align'):
            self.L.append(f".p2align {self.o['align']}")
        self.lab("L_loop")
        for j in range(NST):
            self.period((1 + j) % NST)
            if j < NST - 1:
                self.e("s_cbranch_scc1 L_drain")
            else:
                self.e("s_cbranch_scc0 L_loop")
        self.drain()
        self.epilogue()
        body = "\n".join(self.L)
        return (HEADER + f"; @launch grid=(256,1,1) block=(256,1,1) lds={2*LDS_V}\n"
                ".amdgcn_target \"amdgcn-amd-amdhsa--gfx950\"\n.text\n"
                f".globl {NAME}_kernel\n.p2align 8\n.type {NAME}_kernel,@function\n{NAME}_kernel:\n"
                + body + "\n"
                ".section .rodata,\"a\"\n.p2align 6\n"
                f".amdhsa_kernel {NAME}_kernel\n"
                "  .amdhsa_next_free_vgpr 512\n  .amdhsa_next_free_sgpr 102\n  .amdhsa_accum_offset 256\n"
                "  .amdhsa_group_segment_fixed_size 0\n  .amdhsa_kernarg_size 64\n  .amdhsa_user_sgpr_count 2\n"
                "  .amdhsa_user_sgpr_kernarg_segment_ptr 1\n  .amdhsa_system_sgpr_workgroup_id_x 1\n"
                ".end_amdhsa_kernel\n")


DEFAULT = dict(
    sm_start=8, vread0=17, kread0=97, kstride=1,
    bar_slot=92, dma_slots=[114, 122, 4, 12, 52, 64, 72, 80],
    m0k_slot=93, m0v_slot=14, rl_slot=89, cnt_slot=94, nq_early=2,
)

def parse_opts(args):
    o = dict(DEFAULT)
    for a in args:
        k, _, v = a.partition("=")
        if v == "": o[k] = True
        else:
            try: o[k] = eval(v)
            except Exception: o[k] = v
    return o

if __name__ == "__main__":
    o = parse_opts(sys.argv[2:])
    open(sys.argv[1], "w").write(Gen(o).build())
```

```python
import sys, struct, math

NAME = "standalone__paged_block_table_kv_pagedattention__prompt"

HEADER = """; Kernarg layout for this problem (64 bytes, ptrs only, base s[0:1]):
"""

def f32bits(x):
    return struct.unpack("<I", struct.pack("<f", x))[0]

S_W = 3; S_CL = 4; S_N = 5; S_REM = 6; S_T = 7; S_IDX = 8; S_END = 9
S_OFF = 10; S_T3 = 11; S_DMAB = 12; S_DMAV = 13; S_ROW = 14; S_HEAD = 15
S_PTR = 16
P_K = 18; P_V = 20
S_C = 32
S_T2 = 34; S_ZERO = 35
SRD_Q = 36; S_KB = 40; S_VB = 42; SRD_X = 44; SRD_O = 48; SRD_BT = 52; SRD_D = 56
S_MASK = 60
STAMP_REG = [92, 96, 98, 100, 16, 22, 26, 28, 52, 54]
V_LANE = 2
V_S = 16; V_P = 80; V_NEGM = 112; V_Q = 128
V_KA = 192; V_VA = 196; V_DK = 204; V_DVV = 208; V_BT = 212
V_OOFF = 213; V_G4 = 214; V_NINF = 215; V_L = 216; V_ONES = 232; V_KT = 236
V_MS = [12, 14, 252, 254]
V_QD = 5
V_QA = 120
QSLICE = [16384, 65536 + 16384, 32768, 65536 + 32768]
LDS_O = 131072
A_O = 0; A_K = 128; A_V = 192

NST = 3
LDS_V = 65536
KV_BYTES = 132 * 65536
Q_BYTES = 16777216

def vr(b, n=1): return f"v{b}" if n == 1 else f"v[{b}:{b+n-1}]"
def ar(b, n=1): return f"a{b}" if n == 1 else f"a[{b}:{b+n-1}]"
def sr(b, n=1): return f"s{b}" if n == 1 else f"s[{b}:{b+n-1}]"
MF = "v_mfma_f32_16x16x32_bf16"

PATTERN = (
    "e e c D e e c D e e c D e e c D e e c "
    "vv e vv e vc e vv e vc e vv e vc e vv e vc "
    "vv e vv e vc e vv e vc e vv e vc e vv e vc "
    "vv e vv e cr e - e c e - e c D e e c - e e c D - "
    "e e c - e e c D e e c - e e c D e - e c e - e c e - e "
    "kc e kk e kc kk k e kk e kc e kk e kc e kk e kc e - e c e - e c e - e c - -"
).split()
assert len(PATTERN) == 136, len(PATTERN)


class Gen:
    def __init__(self, opt):
        self.o = opt
        self.L = []
        self.nst = 0
        self.vm = []
    def e(self, s): self.L.append("    " + s)
    def lab(self, s): self.L.append(s + ":")
    def c(self, s): self.L.append("    ; " + s)
    def vmem(self, s, tag):
        self.e(s); self.vm.append(tag)
    def vmwait(self, *tags):
        last = max(i for i, t in enumerate(self.vm) if t in tags)
        self.e(f"s_waitcnt vmcnt({len(self.vm) - 1 - last})")

    def mfma_qk(self, qb, kb, s, first=False):
        d = vr(V_S + 16*qb + 4*kb, 4)
        c = d if s > 0 else ("0" if first else vr(V_NEGM + 4*qb, 4))
        a = vr(V_KT + 4*s, 4) if first else ar(A_K + 4*(4*kb+s), 4)
        return f"{MF} {d}, {a}, {vr(V_Q+16*qb+4*s,4)}, {c}"
    def mfma_pv(self, qb, db, ks):
        d = ar(A_O + 32*qb + 4*db, 4)
        return f"{MF} {d}, {ar(A_V+4*(2*db+ks),4)}, {vr(V_P+8*qb+4*ks,4)}, {d}"
    def mfma_sum(self, qb, ks):
        d = vr(V_L + 4*qb, 4)
        return f"{MF} {d}, {vr(V_ONES,4)}, {vr(V_P+8*qb+4*ks,4)}, {d}"
    def kread(self, f, stage, temp=False):
        kb, s = f // 4, f % 4
        d = vr(V_KT + 4*s, 4) if temp else ar(A_K + 4*f, 4)
        return f"ds_read_b128 {d}, {vr(V_KA+s)} offset:{stage*16384+kb*4096}"
    def vread(self, i, stage):
        f, u = i // 2, i % 2
        db, ks = f // 2, f % 2
        return f"ds_read_b64_tr_b16 {ar(A_V+4*f+2*u,2)}, {vr(V_VA+db)} offset:{stage*16384+(32*ks+16*u)*256}"
    def dma(self, kind, i):
        v, b = (V_DK, S_KB) if kind == 'K' else (V_DVV, S_VB)
        return f"global_load_lds_dwordx4 {vr(v+i)}, {sr(b,2)}" + (f" offset:{1024*i}" if i else "") + self.o.get('ld_flags', '')
    def m0(self, kind, stage):
        return f"s_add_u32 m0, {sr(S_DMAB if kind == 'K' else S_DMAV)}, {stage*16384}"
    def base(self, kind, soff):
        b, p = (S_KB, P_K) if kind == 'K' else (S_VB, P_V)
        return [f"s_add_u32 {sr(b)}, {sr(p)}, {sr(soff)}", f"s_addc_u32 {sr(b+1)}, {sr(p+1)}, 0"]
    def sm_exp(self, qb, e):
        r = V_S + 16*qb + e
        return f"v_exp_f32 {vr(r)}, {vr(r)}"
    def sm_cvt(self, qb, e):
        r = V_S + 16*qb + e
        return f"v_cvt_pk_bf16_f32 {vr(V_P+8*qb+e//2)}, {vr(r-1)}, {vr(r)}"
    def stamp(self, name):
        if self.o.get('stamp') and name in self.o['stamps']:
            self.e(f"s_memtime {sr(STAMP_REG[self.nst],2)}")
            self.nst += 1
    def group(self, kind, stage, soff, tag):
        for x in self.base(kind, soff): self.e(x)
        self.e(self.m0(kind, stage))
        self.e("s_nop 0")
        for i in range(4): self.vmem(self.dma(kind, i), tag)
        self.stamp('i' + tag)

    def emit_load(self, item):
        for x, tag in item:
            if tag: self.vmem(x, tag)
            else: self.e(x)

    def scale_q(self, qb):
        out = []; e = out.append
        for s in range(4):
            TA = V_S + 16*qb + 8*(s % 2)
            e(f"s_waitcnt lgkmcnt({3-s})")
            for i in range(4):
                q = V_Q + 16*qb + 4*s + i
                e(f"v_lshlrev_b32 {vr(TA+2*i)}, 16, {vr(q)}")
                e(f"v_and_b32 {vr(TA+2*i+1)}, 0xffff0000, {vr(q)}")
            for i in range(4):
                e(f"v_pk_mul_f32 {vr(TA+2*i,2)}, {vr(TA+2*i,2)}, {sr(S_C,2)}")
            for i in range(4):
                q = V_Q + 16*qb + 4*s + i
                e(f"v_cvt_pk_bf16_f32 {vr(q)}, {vr(TA+2*i)}, {vr(TA+2*i+1)}")
        return out

    def first_qk(self, blocks, shadow=()):
        e = self.e; tag = ''.join(map(str, blocks))
        self.done_q = getattr(self, 'done_q', '') + tag
        M = {qb: V_MS[qb] for qb in blocks}
        shadow = list(shadow)
        if 3 in blocks:
            for i in range(4):
                e(f"v_mov_b32 {vr(V_S+48+12+i)}, {vr(V_NINF)}")
        for kb in range(4):
            if kb:
                e(f"s_cmp_le_u32 {sr(S_REM)}, {16*kb}")
                e(f"s_cbranch_scc1 L_fa{tag}")
                for s in range(4): e(self.kread(4*kb+s, 3, temp=True))
            e("s_waitcnt lgkmcnt(0)")
            if kb == 0: e("s_nop 0")
            for qb in blocks:
                for s in range(4):
                    e(self.mfma_qk(qb, kb, s, first=True))
                    if kb == 0:
                        for _ in range(2):
                            if shadow: e(shadow.pop(0))
            if kb == 0 and shadow:
                e("s_waitcnt lgkmcnt(6)")
                n = len(shadow)
                while shadow: e(shadow.pop(0))
                if n < 7 and len(blocks) < 3: e(f"s_nop {7-n}")
            elif len(blocks) < 3:
                e("s_nop 7")
            for qb in blocks:
                S = V_S + 16*qb + 4*kb
                for r in range(4):
                    e(f"v_cndmask_b32 {vr(S+r)}, {vr(V_NINF)}, {vr(S+r)}, {sr(S_MASK+2*(4*kb+r),2)}")
                if kb == 0:
                    e(f"v_max3_f32 {vr(M[qb])}, {vr(S)}, {vr(S+1)}, {vr(S+2)}")
                    e(f"v_max_f32 {vr(M[qb])}, {vr(M[qb])}, {vr(S+3)}")
                else:
                    e(f"v_max3_f32 {vr(M[qb])}, {vr(M[qb])}, {vr(S)}, {vr(S+1)}")
                    e(f"v_max3_f32 {vr(M[qb])}, {vr(M[qb])}, {vr(S+2)}, {vr(S+3)}")
        self.lab(f"L_fa{tag}")
        if 3 not in blocks:
            for s in range(4): e(self.kread(s, 3, temp=True))
        for sw in ("v_permlane32_swap_b32", "v_permlane16_swap_b32"):
            for qb in blocks: e(f"v_mov_b32 {vr(M[qb]+1)}, {vr(M[qb])}")
            e("s_nop 1" if len(blocks) < 2 else "s_nop 0")
            for qb in blocks: e(f"{sw} {vr(M[qb])}, {vr(M[qb]+1)}")
            for qb in blocks: e(f"v_max_f32 {vr(M[qb])}, {vr(M[qb])}, {vr(M[qb]+1)}")
        for qb in blocks:
            for r in range(4):
                e(f"v_sub_f32 {vr(V_NEGM+4*qb+r)}, 0, {vr(M[qb])}")
        for kb in range(4):
            if kb:
                e(f"s_cmp_le_u32 {sr(S_REM)}, {16*kb}")
                e(f"s_cbranch_scc1 L_fb{tag}")
            for qb in blocks:
                S = V_S + 16*qb + 4*kb
                for r in range(4):
                    e(f"v_sub_f32 {vr(S+r)}, {vr(S+r)}, {vr(M[qb])}")
                if kb == 3 and qb == 3:
                    continue
                for r in range(4):
                    e(self.sm_exp(qb, 4*kb+r))
            if len(blocks) < 2: e("s_nop 0")
            for qb in blocks:
                if kb == 3 and qb == 3:
                    continue
                for r in (1, 3):
                    e(self.sm_cvt(qb, 4*kb+r))
        self.lab(f"L_fb{tag}")

    def first_pv(self, blocks, shadow):
        e = self.e; tag = ''.join(map(str, blocks))
        shadow = list(shadow)
        for ks in range(2):
            if ks:
                e("s_waitcnt lgkmcnt(0)")
                e(f"s_cmp_le_u32 {sr(S_REM)}, 32")
                e(f"s_cbranch_scc1 L_fc{tag}")
            for qb in blocks:
                for x in [self.mfma_sum(qb, ks)] + [self.mfma_pv(qb, db, ks) for db in range(8)]:
                    e(x)
                    if ks == 0 and shadow: self.emit_load(shadow.pop(0))
            if ks == 0:
                while shadow: self.emit_load(shadow.pop(0))
        self.lab(f"L_fc{tag}")

    def prologue(self):
        e = self.e; o = self.o
        e("s_cmp_ge_u32 s2, 256")
        e("s_cbranch_scc1 L_end")
        e(f"s_load_dwordx16 {sr(S_PTR,16)}, s[0:1], 0")
        self.stamp('start')
        if o.get('stamp'):
            e("s_memrealtime s[94:95]")
        if o.get('pf'):
            e("s_getpc_b64 s[66:67]")
            self.lab("L_pc")
            e("v_lshlrev_b32 v14, 7, v0")
            e("v_min_u32 v14, L_code_end-L_pc-4, v14")
            self.vmem("global_load_dword v15, v14, s[66:67]", 'pf')
        e("v_lshrrev_b32 v1, 6, v0")
        e(f"v_and_b32 {vr(V_LANE)}, 63, v0")
        e(f"v_readfirstlane_b32 {sr(S_W)}, v1")
        e(f"s_and_b32 {sr(S_T)}, s2, 7")
        e(f"s_lshl_b32 {sr(S_T)}, {sr(S_T)}, 1")
        e(f"s_bfe_u32 {sr(S_HEAD)}, s2, 0x10003")
        e(f"s_add_u32 {sr(S_HEAD)}, {sr(S_HEAD)}, {sr(S_T)}")
        e(f"s_lshr_b32 {sr(S_T)}, s2, 4")
        e(f"s_lshl4_add_u32 {sr(S_ROW)}, {sr(S_HEAD)}, {sr(S_T)}")
        e(f"s_lshl2_add_u32 {sr(S_ROW)}, {sr(S_ROW)}, {sr(S_W)}")
        e(f"s_lshl_b32 {sr(S_ROW)}, {sr(S_ROW)}, 14")
        e(f"s_lshl_b32 {sr(S_DMAB)}, {sr(S_W)}, 12")
        e(f"v_lshrrev_b32 v3, 4, {vr(V_LANE)}")
        e(f"v_and_b32 v4, 15, {vr(V_LANE)}")
        e("v_xor_b32 v11, v4, v3")
        e("v_lshlrev_b32 v11, 4, v11")
        e(f"v_lshl_add_u32 {vr(V_QD)}, v3, 8, v11")
        e(f"v_and_b32 v9, 31, {vr(V_LANE)}")
        e(f"s_lshl_b32 {sr(S_T2)}, {sr(S_W)}, 2")
        e(f"v_lshl_add_u32 v9, v9, 4, {sr(S_T2)}")
        e(f"s_mov_b32 {sr(SRD_BT+2)}, 512")
        e(f"s_mov_b32 {sr(SRD_BT+3)}, 0x20000")
        e(f"s_mov_b32 {sr(SRD_Q+2)}, {Q_BYTES}")
        e(f"s_mov_b32 {sr(SRD_Q+3)}, 0x20000")
        for i in range(1, 4):
            e(f"v_xor_b32 {vr(V_QD+i)}, {64*i}, {vr(V_QD)}")
        e(f"s_add_u32 m0, {sr(S_DMAB)}, {QSLICE[0]}")
        e("s_waitcnt lgkmcnt(0)")
        self.stamp('karg')
        def srdbase(b, p):
            e(f"s_mov_b32 {sr(b)}, {sr(p)}")
            e(f"s_and_b32 {sr(b+1)}, {sr(p+1)}, 0xffff")
        srdbase(SRD_BT, S_PTR+6)
        self.vmem(f"buffer_load_dword {vr(V_BT)}, v9, {sr(SRD_BT,4)}, 0 offen", 'bt')
        e(f"s_load_dword {sr(S_CL)}, {sr(S_PTR+8,2)}, 0")
        srdbase(SRD_Q, S_PTR+0)
        if o.get('tlb'):
            e(f"v_lshlrev_b32 v14, 17, {vr(V_LANE)}")
            self.vmem(f"global_load_dword v15, v14, {sr(P_K,2)}", 'tlb')
            self.vmem(f"global_load_dword v15, v14, {sr(P_V,2)}", 'tlb')
        QO = [S_ROW, 45, 46, 47]
        self.QO = QO
        def qload(qb):
            g = [[(f"buffer_load_dwordx4 {vr(V_QD+i)}, {sr(SRD_Q,4)}, {sr(QO[qb])} offen" + (f" offset:{1024*i}" if i else "") + o.get('q_flags', '') + " lds", f'q{qb}')] for i in range(4)]
            if qb:
                g[0] = [(f"s_add_u32 m0, {sr(S_DMAB)}, {QSLICE[qb]}", None), (f"s_add_u32 {sr(QO[qb])}, {sr(S_ROW)}, {4096*qb}", None)] + g[0]
            return g
        def grp(kind, stage, soff, tag):
            g = [[(self.dma(kind, i), tag)] for i in range(4)]
            g[0] = [(x, None) for x in self.base(kind, soff)] + [(self.m0(kind, stage), None), ("s_nop 0", None)] + g[0]
            return g
        self.grp = grp
        def mix(work, loads):
            n = len(loads); k = 0
            for i, x in enumerate(work):
                while k < n and k * len(work) <= i * n:
                    self.emit_load(loads[k]); k += 1
                e(x)
            while k < n:
                self.emit_load(loads[k]); k += 1
        init = []
        a = init.append
        a(f"s_lshl_b32 {sr(S_HEAD)}, {sr(S_HEAD)}, 8")
        a(f"s_add_u32 {sr(S_DMAV)}, {sr(S_DMAB)}, {LDS_V}")
        a(f"s_mov_b32 {sr(SRD_O+2)}, {Q_BYTES}")
        a(f"s_mov_b32 {sr(SRD_O+3)}, 0x20000")
        a(f"v_lshl_add_u32 {vr(V_DK)}, v3, 12, v11")
        a(f"v_lshl_add_u32 {vr(V_KA)}, v4, 8, v11")
        a("v_lshlrev_b32 v1, 1, v3")
        a("v_xor_b32 v1, v4, v1")
        a("v_lshlrev_b32 v1, 4, v1")
        a(f"v_lshl_add_u32 {vr(V_DVV)}, v3, 12, v1")
        for i in range(1, 4):
            a(f"v_xor_b32 v1, {64*i}, {vr(V_DK)}")
            a(f"v_add_u32 {vr(V_DK+i)}, {15360*i}, v1")
            if i % 2:
                a(f"v_xor_b32 v1, 0x80, {vr(V_DVV)}")
                a(f"v_add_u32 {vr(V_DVV+i)}, {15360*i}, v1")
            else:
                a(f"v_add_u32 {vr(V_DVV+i)}, {15360*i}, {vr(V_DVV)}")
        a(f"v_lshlrev_b32 {vr(V_G4)}, 2, v3")
        for s in range(1, 4):
            a(f"v_xor_b32 {vr(V_KA+s)}, {64*s}, {vr(V_KA)}")
        for s in range(4):
            a(f"v_add_u32 {vr(V_QA+s)}, {sr(S_DMAB)}, {vr(V_KA+s)}")
            a(f"v_add_u32 {vr(V_QA+4+s)}, {sr(S_DMAV)}, {vr(V_KA+s)}")
        a(f"v_lshrrev_b32 v1, 2, {vr(V_LANE)}")
        a("v_and_b32 v11, 7, v1")
        a("v_lshlrev_b32 v11, 5, v11")
        a("v_lshl_add_u32 v11, v1, 8, v11")
        a("v_and_b32 v1, 3, v4")
        a("v_lshl_add_u32 v11, v1, 3, v11")
        a(f"v_add_u32 {vr(V_VA)}, {LDS_V}, v11")
        for db in range(1, 8):
            a(f"v_xor_b32 {vr(V_VA+db)}, {32*db}, {vr(V_VA)}")
        a(f"v_mov_b32 {vr(V_NINF)}, 0xff800000")
        c = (1.0/math.sqrt(128.0)) * math.log2(math.e)
        a(f"s_mov_b32 {sr(S_C)}, {hex(f32bits(c))}")
        a(f"s_mov_b32 {sr(S_C+1)}, {hex(f32bits(c))}")
        for i in range(4):
            a(f"v_mov_b32 {vr(V_P+i)}, 0")
        for i in range(4):
            a(f"v_mov_b32 {vr(V_ONES+i)}, 0x3f803f80")
        early = []
        for qb in range(o['nq_early']): early += qload(qb)
        mix(init, early)
        srdbase(SRD_O, S_PTR+10)
        if o.get('stamp'):
            srdbase(SRD_D, S_PTR+14)
            e(f"s_mov_b32 {sr(SRD_D+2)}, 268435456")
            e(f"s_mov_b32 {sr(SRD_D+3)}, 0x20000")
        Z = vr(V_P, 4)
        for i in range(8):
            e(f"v_mfma_f32_32x32x16_bf16 {ar(16*i,16)}, {Z}, {Z}, 0")
        e(f"v_mfma_f32_32x32x16_bf16 {vr(V_L,16)}, {Z}, {Z}, 0")
        e(f"v_mfma_f32_32x32x16_bf16 {vr(V_P+16,16)}, {Z}, {Z}, 0")
        for i in range(4, 16):
            e(f"v_mov_b32 {vr(V_P+i)}, 0")
        e("s_waitcnt lgkmcnt(0)")
        e(f"s_cmp_le_i32 {sr(S_CL)}, 0")
        e(f"s_cselect_b32 {sr(S_ZERO)}, 1, 0")
        e(f"s_cselect_b32 {sr(S_CL)}, 0x800, {sr(S_CL)}")
        e(f"s_min_u32 {sr(S_CL)}, {sr(S_CL)}, 0x800")
        e(f"s_add_u32 {sr(S_N)}, {sr(S_CL)}, 63")
        e(f"s_lshr_b32 {sr(S_N)}, {sr(S_N)}, 6")
        e(f"s_sub_u32 {sr(S_IDX)}, {sr(S_N)}, 1")
        e(f"s_lshl_b32 {sr(S_T2)}, {sr(S_IDX)}, 6")
        e(f"s_sub_u32 {sr(S_REM)}, {sr(S_CL)}, {sr(S_T2)}")
        e(f"s_add_u32 {sr(S_END)}, {sr(S_N)}, 2")
        e("v_lshlrev_b32 v9, 2, v9")
        e(f"v_cmp_gt_u32 vcc, {sr(S_CL)}, v9")
        e(f"v_sub_u32 v10, {sr(S_REM)}, {vr(V_G4)}")
        self.vmwait('bt')
        self.stamp('bt')
        e(f"v_cndmask_b32 {vr(V_BT)}, 0, {vr(V_BT)}, vcc")
        e(f"v_min_u32 {vr(V_BT)}, 0x83, {vr(V_BT)}")
        e(f"v_lshlrev_b32 {vr(V_BT)}, 16, {vr(V_BT)}")
        e(f"v_add_u32 {vr(V_BT)}, {sr(S_HEAD)}, {vr(V_BT)}")
        e("s_nop 0")
        T0, T1, T2, T3 = S_T, S_T3, 44, S_OFF
        e(f"v_readlane_b32 {sr(T0)}, {vr(V_BT)}, {sr(S_IDX)}")
        e(f"v_readlane_b32 {sr(T1)}, {vr(V_BT)}, 0")
        e(f"v_readlane_b32 {sr(T2)}, {vr(V_BT)}, 1")
        e(f"v_readlane_b32 {sr(T3)}, {vr(V_BT)}, 2")
        e(f"s_mov_b32 {sr(S_IDX)}, 3")
        masks = [f"v_cmp_lt_i32 {sr(S_MASK+2*(4*kb+r),2)}, {16*kb+r}, v10" for kb in range(4) for r in range(4)]
        G = dict(k0=grp('K', 3, T0, 'k0'), v0=grp('V', 3, T0, 'v0'), k1=grp('K', 0, T1, 'k1'), v1=grp('V', 0, T1, 'v1'),
                 k2=grp('K', 1, T2, 'k2'), v2=grp('V', 1, T2, 'v2'), k3=grp('K', 2, T3, 'k3'))
        for qb in range(4): G[f'q{qb}'] = qload(qb)
        def loads(names):
            out = []
            for n in names.split(): out += G[n]
            return out
        def scale(qb, names=""):
            self.vmwait(f'q{qb}')
            self.stamp(f'q{qb}')
            for s in range(4):
                e(f"ds_read_b128 {vr(V_Q+16*qb+4*s,4)}, {vr(V_QA+4*(qb%2)+s)} offset:{16384*(1+qb//2)}")
            mix(self.scale_q(qb), loads(names))
            e(f"s_cmp_eq_u32 {sr(S_ZERO)}, 1")
            e(f"s_cbranch_scc1 L_zeroq{qb}")
            self.lab(f"L_zeroq_ret{qb}")
        mix(masks, loads(o['ld_a']))
        self.stamp('lda')
        v0 = [self.vread(i, 3) for i in range(32) if (i // 2) % 2 == 0]
        v1 = [self.vread(i, 3) for i in range(32) if (i // 2) % 2 == 1]
        k1 = [self.kread(f, 0) for f in range(16)]
        RD = dict(V0=v0, V1=v1, K1=k1)
        for step in o['seq'].split():
            name, _, arg = step.partition(':')
            args = [x for x in arg.split(',') if x]
            if name[0] == 's':
                scale(int(name[1]), ' '.join(args))
            elif name in 'AB':
                self.vmwait(*args)
                e("s_barrier")
                self.stamp('bar' + name)
                if name == 'A':
                    for s in range(4): e(self.kread(s, 3, temp=True))
            elif name[0] == 'Q':
                self.first_qk([int(x) for x in name[1:]], sum((RD[x] for x in args), []))
                self.stamp(name)
            elif name[0] == 'P':
                rd = sum((RD[x] for x in args if x in RD), [])
                dm = loads(' '.join(x for x in args if x not in RD))
                sh = []
                nm = 9 * (len(name) - 1)
                e("s_waitcnt lgkmcnt(4)" if '3' not in self.done_q else "s_waitcnt lgkmcnt(0)")
                e("s_nop 0")
                while rd or dm:
                    if rd: sh.append([(rd.pop(0), None), (rd.pop(0), None)])
                    elif len(sh) + 2 * len(dm) <= nm: sh.append([])
                    if dm and (len(sh) % 5 in (1, 3) or not rd): sh.append(dm.pop(0))
                self.first_pv([int(x) for x in name[1:]], sh)
                self.stamp(name)
            elif name == 'L':
                for x in loads(' '.join(args)): self.emit_load(x)
            elif name == 'R':
                for x in args:
                    for i, r in enumerate(RD[x]):
                        if i == 8: e("s_waitcnt lgkmcnt(2)")
                        e(r)
        for x in self.base('V', T3): e(x)
        self.stamp('loop')
        if o.get('stamp'): e("s_memrealtime s[24:25]")
        e("s_waitcnt lgkmcnt(0)")
        e(f"s_cmp_eq_u32 {sr(S_N)}, 1")
        e("s_cbranch_scc1 L_drain")

    def period(self, u):
        o = self.o
        NS = 136
        pat = o.get('pattern', PATTERN)
        mf = [None]*NS
        qk_end = {}; pv_first = {}; vuse = {}; kuse = {}
        for qb in range(4):
            b = 34*qb
            for k in range(16):
                mf[b + k] = self.mfma_qk(qb, k // 4, k % 4)
                qk_end[(qb, k // 4)] = b + k
            pq = (qb + 3) % 4
            mf[b+16] = self.mfma_sum(pq, 0); mf[b+17] = self.mfma_sum(pq, 1)
            for k in range(16):
                mf[b + 18 + k] = self.mfma_pv(pq, k // 2, k % 2)
        salu = [[] for _ in range(NS)]
        def put(k, x): salu[k].append(x)
        fill = [[] for _ in range(NS)]
        ne = 60; nc = 30; nv = 0; nk = 0; nd = 0
        vslot = []; kslot = []; pos = {}
        for k, tok in enumerate(pat):
            for t in tok:
                if t == 'e':
                    qb, el = (ne // 16) % 4, ne % 16
                    if ne >= 64:
                        assert k - qk_end[(qb, el // 4)] >= 4, ("exp early", k, qb, el)
                    pos[('e', ne)] = k
                    if not o.get('no_valu'): fill[k].append(self.sm_exp(qb, el))
                    ne += 1
                elif t == 'c':
                    el2 = 2*nc + 1
                    qb, el = (el2 // 16) % 4, el2 % 16
                    assert pos[('e', el2)] < k, ("cvt early", k)
                    dead = (34*((qb+1) % 4) + 16) + (136 if (qb == 3 and el2 >= 64) else 0)
                    assert k < dead - 1, ("cvt late", k, qb, el)
                    if not o.get('no_valu'): fill[k].append(self.sm_cvt(qb, el))
                    nc += 1
                elif t == 'v':
                    assert k > 18 + nv // 2, ("v early", k, nv)
                    vslot.append(k)
                    if not o.get('no_lds'): fill[k].append(self.vread(nv, u))
                    nv += 1
                elif t == 'k':
                    assert k > 102 + nk, ("k early", k, nk)
                    kslot.append(k)
                    if not o.get('no_lds'): fill[k].append(self.kread(nk, (u+1) % NST))
                    nk += 1
                elif t == 'D':
                    kind, i = ('V', nd) if nd < 4 else ('K', nd - 4)
                    pos[('D', nd)] = k
                    if not o.get('no_dma'): fill[k].append(self.dma(kind, i))
                    nd += 1
                elif t == 'r':
                    pos['r'] = k
                    fill[k].append(f"v_readlane_b32 {sr(S_OFF)}, {vr(V_BT)}, {sr(S_IDX)}")
        assert (ne, nc, nv, nk, nd) == (124, 62, 32, 16, 8), (ne, nc, nv, nk, nd)
        w1, w1frags, b = o['w1'], o['w1frags'], o['bar_slot']
        issued = sum(1 for k in vslot if k < w1)
        assert w1 <= 51 and b - 1 <= 51 + w1frags
        put(w1, f"s_waitcnt lgkmcnt({issued - 2*w1frags})")
        put(b-1, "s_waitcnt vmcnt(8) lgkmcnt(0)" if not o.get('no_dma') else "s_waitcnt lgkmcnt(0)")
        assert max(vslot) < b - 1 and min(kslot) > b and pos[('D', 4)] > b + 1 and pos[('D', 3)] < b - 1
        if not o.get('no_barrier'): put(b, "s_barrier")
        put(135, "s_waitcnt lgkmcnt(0)")
        put(pos[('D', 0)] - 2, self.m0('V', (u + NST - 1) % NST))
        put(b+1, self.m0('K', u))
        kb_ = self.base('K', S_OFF); vb_ = self.base('V', S_OFF)
        r = pos['r']
        put(r+2, kb_[0]); put(r+3, kb_[1])
        assert r + 3 < b - 1
        put(b+4, vb_[0]); put(b+5, vb_[1])
        put(b+7, f"s_add_u32 {sr(S_IDX)}, {sr(S_IDX)}, 1")
        put(b+8, f"s_cmp_eq_u32 {sr(S_IDX)}, {sr(S_END)}")
        if o.get('pstamp'):
            put(b+9, "s_memtime s[100:101]")
            fill[134].append("s_waitcnt lgkmcnt(0)")
            fill[134].append(f"v_cmp_eq_u32 vcc, {sr(S_IDX)}, {vr(V_LANE)}")
            fill[135].append("v_mov_b32 v254, s100")
            fill[135].append("v_cndmask_b32 v255, v255, v254, vcc")
        self.c(f"---- period, stage {u}")
        for k in range(NS):
            self.e(mf[k])
            assert len(salu[k]) <= 1 and not (salu[k] and 'D' in pat[k]), k
            for x in salu[k]: self.e(x)
            for x in fill[k]: self.e(x)

    def drain(self):
        e = self.e
        self.lab("L_drain")
        for el in range(12, 16): e(self.sm_exp(3, el))
        e("s_nop 0")
        for el in (13, 15): e(self.sm_cvt(3, el))
        e("s_nop 1")
        e(self.mfma_sum(3, 0)); e(self.mfma_sum(3, 1))
        for k in range(16):
            e(self.mfma_pv(3, k // 2, k % 2))

    def epilogue(self):
        e = self.e; o = self.o
        self.stamp('epi')
        if o.get('stamp'): e("s_memrealtime s[30:31]")
        T = V_KT
        WA = V_KA
        e(f"s_lshl_b32 {sr(S_T)}, {sr(S_W)}, 13")
        e(f"s_add_u32 {sr(S_T)}, {sr(S_T)}, {LDS_O}")
        e(f"v_lshrrev_b32 v1, 5, {vr(V_LANE)}")
        e("v_xor_b32 v1, v1, v4")
        e("v_lshlrev_b32 v1, 4, v1")
        e("v_lshl_add_u32 v1, v4, 8, v1")
        e("v_and_b32 v11, 1, v3")
        e("v_lshl_add_u32 v1, v11, 3, v1")
        e(f"v_add_u32 {vr(WA)}, {sr(S_T)}, v1")
        for db in range(1, 8):
            e(f"v_xor_b32 {vr(WA+db)}, {32*db}, {vr(WA)}")
        for i in range(4):
            e(f"v_add_u32 {vr(V_QD+i)}, {sr(S_T)}, {vr(V_QD+i)}")
        e(f"v_lshlrev_b32 {vr(V_OOFF)}, 4, {vr(V_LANE)}")
        for qb in range(4):
            e(f"v_rcp_f32 {vr(T+2*qb)}, {vr(V_L+4*qb)}")
        e("s_nop 0")
        for qb in range(4):
            e(f"v_mov_b32 {vr(T+2*qb+1)}, {vr(T+2*qb)}")
        RB = 128
        def readback(qb):
            return [f"ds_read_b128 {vr(RB+16*qb+4*i,4)}, {vr(V_QD+i)} offset:{4096*(qb%2)+1024*i}" for i in range(4)]
        def store(qb, i):
            return f"buffer_store_dwordx4 {vr(RB+16*qb+4*i,4)}, {vr(V_OOFF)}, {sr(SRD_O,4)}, {sr(self.QO[qb])} offen" + (f" offset:{1024*i}" if i else "") + o.get('st_flags', '')
        n = 0
        for qb in range(4):
            for p in range(4):
                W = 16 + 16*(n % 4); n += 1
                for i in range(8):
                    e(f"v_accvgpr_read_b32 {vr(W+i)}, {ar(A_O+32*qb+8*p+i)}")
                if qb and p == 1:
                    e("s_waitcnt lgkmcnt(2)")
                if qb and p >= 1:
                    e(store(qb-1, p-1))
                    if p == 3: e(store(qb-1, 3))
                for i in range(4):
                    e(f"v_pk_mul_f32 {vr(W+2*i,2)}, {vr(W+2*i,2)}, {vr(T+2*qb,2)}")
                for i in range(4):
                    e(f"v_cvt_pk_bf16_f32 {vr(W+8+i)}, {vr(W+2*i)}, {vr(W+2*i+1)}")
                for h in range(2):
                    e(f"ds_write_b64 {vr(WA+2*p+h)}, {vr(W+8+2*h,2)} offset:{4096*(qb%2)}")
            for x in readback(qb): e(x)
        for i in range(4):
            e(f"s_waitcnt lgkmcnt({3-i})")
            e(store(3, i))
        if o.get('stamp'):
            self.stamp('stored')
            e("s_waitcnt vmcnt(0)")
            e("s_memtime s[62:63]")
            e("s_memrealtime s[64:65]")
            e("s_getreg_b32 s66, hwreg(HW_REG_XCC_ID)")
            e("s_getreg_b32 s67, hwreg(HW_REG_HW_ID)")
            e("s_waitcnt lgkmcnt(0)")
            e("v_mov_b32 v16, 0")
            n = self.nst
            for k in range(n):
                e(f"v_writelane_b32 v16, {sr(STAMP_REG[k])}, {k}")
            for k, r in enumerate((62, 64, 66, 67, 94, 24, 30)):
                e(f"v_writelane_b32 v16, s{r}, {n+k}")
            e(f"s_lshl_b32 {sr(S_T)}, s2, 2")
            e(f"s_add_u32 {sr(S_T)}, {sr(S_T)}, {sr(S_W)}")
            e(f"s_lshl_b32 {sr(S_T)}, {sr(S_T)}, 8")
            e(f"v_lshlrev_b32 v17, 2, {vr(V_LANE)}")
            e(f"buffer_store_dword {'v255' if o.get('pstamp') else 'v16'}, v17, {sr(SRD_D,4)}, {sr(S_T)} offen")
        self.lab("L_end")
        e("s_endpgm")
        for qb in range(4):
            self.lab(f"L_zeroq{qb}")
            for i in range(16):
                e(f"v_mov_b32 {vr(V_Q+16*qb+i)}, 0")
            e("s_nop 1")
            e(f"s_branch L_zeroq_ret{qb}")
        self.lab("L_code_end")

    def build(self):
        self.prologue()
        if self.o.get('align'):
            self.L.append(f".p2align {self.o['align']}")
        self.lab("L_loop")
        for j in range(NST):
            self.period(j)
            if j < NST - 1:
                self.e("s_cbranch_scc1 L_drain")
            else:
                self.e("s_cbranch_scc0 L_loop")
        self.drain()
        self.epilogue()
        body = "\n".join(self.L)
        return (HEADER + f"; @launch grid=(256,1,1) block=(256,1,1) lds={LDS_O+32768}\n"
                ".amdgcn_target \"amdgcn-amd-amdhsa--gfx950\"\n.text\n"
                f".globl {NAME}_kernel\n.p2align 8\n.type {NAME}_kernel,@function\n{NAME}_kernel:\n"
                + body + "\n"
                ".section .rodata,\"a\"\n.p2align 6\n"
                f".amdhsa_kernel {NAME}_kernel\n"
                "  .amdhsa_next_free_vgpr 512\n  .amdhsa_next_free_sgpr 102\n  .amdhsa_accum_offset 256\n"
                "  .amdhsa_group_segment_fixed_size 0\n  .amdhsa_kernarg_size 64\n  .amdhsa_user_sgpr_count 2\n"
                "  .amdhsa_user_sgpr_kernarg_segment_ptr 1\n  .amdhsa_system_sgpr_workgroup_id_x 1\n"
                ".end_amdhsa_kernel\n")


DEFAULT = dict(stamps=['start','karg','bt','issued','prebar','loop','epi','stored'], w1=51, w1frags=11, bar_slot=63, nq_early=2, ld_a='k0 v0', seq='s0:q2 s1:q3 A:k0,v0 Q01:V0 P01:V1,k1,v1 s2 Q2 P2:k2 B:k1,v1 R:K1 s3:v2,k3 Q3', pf=True, st_flags=' sc0 sc1 nt')

def parse_opts(args):
    o = dict(DEFAULT)
    for a in args:
        k, _, v = a.partition("=")
        if v == "": o[k] = True
        else:
            try: o[k] = eval(v)
            except Exception: o[k] = v
    return o

if __name__ == "__main__":
    o = parse_opts(sys.argv[2:])
    open(sys.argv[1], "w").write(Gen(o).build())
```

```python
import sys, struct, math

NAME = "standalone__paged_block_table_kv_pagedattention__prompt"

HEADER = """; Kernarg layout for this problem (64 bytes, ptrs only, base s[0:1]):
"""

def f32bits(x):
    return struct.unpack("<I", struct.pack("<f", x))[0]

S_W = 3; S_CL = 4; S_N = 5; S_REM = 6; S_T = 7; S_IDX = 8; S_END = 9
S_OFF = 10; S_T3 = 11; S_DMAB = 12; S_DMAV = 13; S_ROW = 14; S_HEAD = 15
S_PTR = 16
P_K = 18; P_V = 20
S_C = 32
S_T2 = 34; S_ZERO = 35
SRD_Q = 36; S_KB = 40; S_VB = 42; SRD_X = 44; SRD_O = 48; SRD_BT = 52; SRD_D = 56
S_MASK = 60
STAMP_REG = [92, 96, 98, 100, 16, 22, 26, 28, 52, 54]
V_LANE = 2
V_S = 16; V_P = 80; V_NEGM = 112; V_Q = 128
V_KA = 192; V_VA = 196; V_DK = 204; V_DVV = 208; V_BT = 212
V_OOFF = 213; V_G4 = 214; V_NINF = 215; V_L = 216; V_ONES = 232; V_KT = 236
V_MS = [12, 14, 252, 254]
V_QD = 5
V_QA = 120
QSLICE = [16384, 65536 + 16384, 32768, 65536 + 32768]
LDS_O = 131072
A_O = 0; A_K = 128; A_V = 192

NST = 3
LDS_V = 65536
KV_BYTES = 132 * 65536
Q_BYTES = 16777216

def vr(b, n=1): return f"v{b}" if n == 1 else f"v[{b}:{b+n-1}]"
def ar(b, n=1): return f"a{b}" if n == 1 else f"a[{b}:{b+n-1}]"
def sr(b, n=1): return f"s{b}" if n == 1 else f"s[{b}:{b+n-1}]"
MF = "v_mfma_f32_16x16x32_bf16"

PATTERN = (
    "e e c D e e c D e e c D e e c D e e c "
    "vv e vv e vc e vv e vc e vv e vc e vv e vc "
    "vv e vv e vc e vv e vc e vv e vc e vv e vc "
    "vv e vv e cr e - e c e - e c D e e c - e e c D - "
    "e e c - e e c D e e c - e e c D e - e c e - e c e - e "
    "kc e kk e kc kk k e kk e kc e kk e kc e kk e kc e - e c e - e c e - e c - -"
).split()
assert len(PATTERN) == 136, len(PATTERN)


class Gen:
    def __init__(self, opt):
        self.o = opt
        self.L = []
        self.nst = 0
        self.vm = []
    def e(self, s): self.L.append("    " + s)
    def lab(self, s): self.L.append(s + ":")
    def c(self, s): self.L.append("    ; " + s)
    def vmem(self, s, tag):
        self.e(s); self.vm.append(tag)
    def vmwait(self, *tags):
        last = max(i for i, t in enumerate(self.vm) if t in tags)
        self.e(f"s_waitcnt vmcnt({len(self.vm) - 1 - last})")

    def mfma_qk(self, qb, kb, s, first=False):
        d = vr(V_S + 16*qb + 4*kb, 4)
        c = d if s > 0 else ("0" if first else vr(V_NEGM + 4*qb, 4))
        a = vr(V_KT + 4*s, 4) if first else ar(A_K + 4*(4*kb+s), 4)
        return f"{MF} {d}, {a}, {vr(V_Q+16*qb+4*s,4)}, {c}"
    def mfma_pv(self, qb, db, ks):
        d = ar(A_O + 32*qb + 4*db, 4)
        return f"{MF} {d}, {ar(A_V+4*(2*db+ks),4)}, {vr(V_P+8*qb+4*ks,4)}, {d}"
    def mfma_sum(self, qb, ks):
        d = vr(V_L + 4*qb, 4)
        return f"{MF} {d}, {vr(V_ONES,4)}, {vr(V_P+8*qb+4*ks,4)}, {d}"
    def kread(self, f, stage, temp=False):
        kb, s = f // 4, f % 4
        d = vr(V_KT + 4*s, 4) if temp else ar(A_K + 4*f, 4)
        return f"ds_read_b128 {d}, {vr(V_KA+s)} offset:{stage*16384+kb*4096}"
    def vread(self, i, stage):
        f, u = i // 2, i % 2
        db, ks = f // 2, f % 2
        return f"ds_read_b64_tr_b16 {ar(A_V+4*f+2*u,2)}, {vr(V_VA+db)} offset:{stage*16384+(32*ks+16*u)*256}"
    def dma(self, kind, i):
        v, b = (V_DK, S_KB) if kind == 'K' else (V_DVV, S_VB)
        return f"global_load_lds_dwordx4 {vr(v+i)}, {sr(b,2)}" + (f" offset:{1024*i}" if i else "") + self.o.get('ld_flags', '')
    def m0(self, kind, stage):
        return f"s_add_u32 m0, {sr(S_DMAB if kind == 'K' else S_DMAV)}, {stage*16384}"
    def base(self, kind, soff):
        b, p = (S_KB, P_K) if kind == 'K' else (S_VB, P_V)
        return [f"s_add_u32 {sr(b)}, {sr(p)}, {sr(soff)}", f"s_addc_u32 {sr(b+1)}, {sr(p+1)}, 0"]
    def sm_exp(self, qb, e):
        r = V_S + 16*qb + e
        return f"v_exp_f32 {vr(r)}, {vr(r)}"
    def sm_cvt(self, qb, e):
        r = V_S + 16*qb + e
        return f"v_cvt_pk_bf16_f32 {vr(V_P+8*qb+e//2)}, {vr(r-1)}, {vr(r)}"
    def stamp(self, name):
        if self.o.get('stamp') and name in self.o['stamps']:
            self.e(f"s_memtime {sr(STAMP_REG[self.nst],2)}")
            self.nst += 1
    def group(self, kind, stage, soff, tag):
        for x in self.base(kind, soff): self.e(x)
        self.e(self.m0(kind, stage))
        self.e("s_nop 0")
        for i in range(4): self.vmem(self.dma(kind, i), tag)
        self.stamp('i' + tag)

    def emit_load(self, item):
        for x, tag in item:
            if tag: self.vmem(x, tag)
            else: self.e(x)

    def scale_q(self, qb):
        out = []; e = out.append
        for s in range(4):
            TA = V_S + 16*qb + 8*(s % 2)
            e(f"s_waitcnt lgkmcnt({3-s})")
            for i in range(4):
                q = V_Q + 16*qb + 4*s + i
                e(f"v_lshlrev_b32 {vr(TA+2*i)}, 16, {vr(q)}")
                e(f"v_and_b32 {vr(TA+2*i+1)}, 0xffff0000, {vr(q)}")
            for i in range(4):
                e(f"v_pk_mul_f32 {vr(TA+2*i,2)}, {vr(TA+2*i,2)}, {sr(S_C,2)}")
            for i in range(4):
                q = V_Q + 16*qb + 4*s + i
                e(f"v_cvt_pk_bf16_f32 {vr(q)}, {vr(TA+2*i)}, {vr(TA+2*i+1)}")
        return out

    def first_qk(self, blocks, shadow=()):
        e = self.e; tag = ''.join(map(str, blocks))
        self.done_q = getattr(self, 'done_q', '') + tag
        M = {qb: V_MS[qb] for qb in blocks}
        shadow = list(shadow)
        if 3 in blocks:
            for i in range(4):
                e(f"v_mov_b32 {vr(V_S+48+12+i)}, {vr(V_NINF)}")
        for kb in range(4):
            if kb:
                e(f"s_cmp_le_u32 {sr(S_REM)}, {16*kb}")
                e(f"s_cbranch_scc1 L_fa{tag}")
                for s in range(4): e(self.kread(4*kb+s, 3, temp=True))
            e("s_waitcnt lgkmcnt(0)")
            if kb == 0: e("s_nop 0")
            for qb in blocks:
                for s in range(4):
                    e(self.mfma_qk(qb, kb, s, first=True))
                    if kb == 0:
                        for _ in range(2):
                            if shadow: e(shadow.pop(0))
            if kb == 0 and shadow:
                e("s_waitcnt lgkmcnt(6)")
                n = len(shadow)
                while shadow: e(shadow.pop(0))
                if n < 7 and len(blocks) < 3: e(f"s_nop {7-n}")
            elif len(blocks) < 3:
                e("s_nop 7")
            for qb in blocks:
                S = V_S + 16*qb + 4*kb
                for r in range(4):
                    e(f"v_cndmask_b32 {vr(S+r)}, {vr(V_NINF)}, {vr(S+r)}, {sr(S_MASK+2*(4*kb+r),2)}")
                if kb == 0:
                    e(f"v_max3_f32 {vr(M[qb])}, {vr(S)}, {vr(S+1)}, {vr(S+2)}")
                    e(f"v_max_f32 {vr(M[qb])}, {vr(M[qb])}, {vr(S+3)}")
                else:
                    e(f"v_max3_f32 {vr(M[qb])}, {vr(M[qb])}, {vr(S)}, {vr(S+1)}")
                    e(f"v_max3_f32 {vr(M[qb])}, {vr(M[qb])}, {vr(S+2)}, {vr(S+3)}")
        self.lab(f"L_fa{tag}")
        if 3 not in blocks:
            for s in range(4): e(self.kread(s, 3, temp=True))
        for sw in ("v_permlane32_swap_b32", "v_permlane16_swap_b32"):
            for qb in blocks: e(f"v_mov_b32 {vr(M[qb]+1)}, {vr(M[qb])}")
            e("s_nop 1" if len(blocks) < 2 else "s_nop 0")
            for qb in blocks: e(f"{sw} {vr(M[qb])}, {vr(M[qb]+1)}")
            for qb in blocks: e(f"v_max_f32 {vr(M[qb])}, {vr(M[qb])}, {vr(M[qb]+1)}")
        for qb in blocks:
            for r in range(4):
                e(f"v_sub_f32 {vr(V_NEGM+4*qb+r)}, 0, {vr(M[qb])}")
        for kb in range(4):
            if kb:
                e(f"s_cmp_le_u32 {sr(S_REM)}, {16*kb}")
                e(f"s_cbranch_scc1 L_fb{tag}")
            for qb in blocks:
                S = V_S + 16*qb + 4*kb
                for r in range(4):
                    e(f"v_sub_f32 {vr(S+r)}, {vr(S+r)}, {vr(M[qb])}")
                if kb == 3 and qb == 3:
                    continue
                for r in range(4):
                    e(self.sm_exp(qb, 4*kb+r))
            if len(blocks) < 2: e("s_nop 0")
            for qb in blocks:
                if kb == 3 and qb == 3:
                    continue
                for r in (1, 3):
                    e(self.sm_cvt(qb, 4*kb+r))
        self.lab(f"L_fb{tag}")

    def first_pv(self, blocks, shadow):
        e = self.e; tag = ''.join(map(str, blocks))
        shadow = list(shadow)
        for ks in range(2):
            if ks:
                e("s_waitcnt lgkmcnt(0)")
                e(f"s_cmp_le_u32 {sr(S_REM)}, 32")
                e(f"s_cbranch_scc1 L_fc{tag}")
            for qb in blocks:
                for x in [self.mfma_sum(qb, ks)] + [self.mfma_pv(qb, db, ks) for db in range(8)]:
                    e(x)
                    if ks == 0 and shadow: self.emit_load(shadow.pop(0))
            if ks == 0:
                while shadow: self.emit_load(shadow.pop(0))
        self.lab(f"L_fc{tag}")

    def prologue(self):
        e = self.e; o = self.o
        e("s_cmp_ge_u32 s2, 256")
        e("s_cbranch_scc1 L_end")
        e(f"s_load_dwordx16 {sr(S_PTR,16)}, s[0:1], 0")
        self.stamp('start')
        if o.get('stamp'):
            e("s_memrealtime s[94:95]")
        if o.get('pf'):
            e("s_getpc_b64 s[66:67]")
            self.lab("L_pc")
            e("v_lshlrev_b32 v14, 7, v0")
            e("v_min_u32 v14, L_code_end-L_pc-4, v14")
            self.vmem("global_load_dword v15, v14, s[66:67]", 'pf')
        e("v_lshrrev_b32 v1, 6, v0")
        e(f"v_and_b32 {vr(V_LANE)}, 63, v0")
        e(f"v_readfirstlane_b32 {sr(S_W)}, v1")
        e(f"s_and_b32 {sr(S_T)}, s2, 7")
        e(f"s_lshl_b32 {sr(S_T)}, {sr(S_T)}, 1")
        e(f"s_bfe_u32 {sr(S_HEAD)}, s2, 0x10003")
        e(f"s_add_u32 {sr(S_HEAD)}, {sr(S_HEAD)}, {sr(S_T)}")
        e(f"s_lshr_b32 {sr(S_T)}, s2, 4")
        e(f"s_lshl4_add_u32 {sr(S_ROW)}, {sr(S_HEAD)}, {sr(S_T)}")
        e(f"s_lshl2_add_u32 {sr(S_ROW)}, {sr(S_ROW)}, {sr(S_W)}")
        e(f"s_lshl_b32 {sr(S_ROW)}, {sr(S_ROW)}, 14")
        e(f"s_lshl_b32 {sr(S_DMAB)}, {sr(S_W)}, 12")
        e(f"v_lshrrev_b32 v3, 4, {vr(V_LANE)}")
        e(f"v_and_b32 v4, 15, {vr(V_LANE)}")
        e("v_xor_b32 v11, v4, v3")
        e("v_lshlrev_b32 v11, 4, v11")
        e(f"v_lshl_add_u32 {vr(V_QD)}, v3, 8, v11")
        e(f"v_and_b32 v9, 31, {vr(V_LANE)}")
        e(f"s_lshl_b32 {sr(S_T2)}, {sr(S_W)}, 2")
        e(f"v_lshl_add_u32 v9, v9, 4, {sr(S_T2)}")
        e(f"s_mov_b32 {sr(SRD_BT+2)}, 512")
        e(f"s_mov_b32 {sr(SRD_BT+3)}, 0x20000")
        e(f"s_mov_b32 {sr(SRD_Q+2)}, {Q_BYTES}")
        e(f"s_mov_b32 {sr(SRD_Q+3)}, 0x20000")
        for i in range(1, 4):
            e(f"v_xor_b32 {vr(V_QD+i)}, {64*i}, {vr(V_QD)}")
        e(f"s_add_u32 m0, {sr(S_DMAB)}, {QSLICE[0]}")
        e("s_waitcnt lgkmcnt(0)")
        self.stamp('karg')
        def srdbase(b, p):
            e(f"s_mov_b32 {sr(b)}, {sr(p)}")
            e(f"s_and_b32 {sr(b+1)}, {sr(p+1)}, 0xffff")
        srdbase(SRD_BT, S_PTR+6)
        self.vmem(f"buffer_load_dword {vr(V_BT)}, v9, {sr(SRD_BT,4)}, 0 offen", 'bt')
        e(f"s_load_dword {sr(S_CL)}, {sr(S_PTR+8,2)}, 0")
        srdbase(SRD_Q, S_PTR+0)
        if o.get('tlb'):
            e(f"v_and_b32 v14, 7, {vr(V_LANE)}")
            e(f"v_lshlrev_b32 v14, 20, v14")
            self.vmem(f"global_load_dword v15, v14, {sr(P_K,2)}", 'tlb')
            self.vmem(f"global_load_dword v15, v14, {sr(P_V,2)}", 'tlb')
        QO = [S_ROW, 45, 46, 47]
        self.QO = QO
        def qload(qb):
            g = [[(f"buffer_load_dwordx4 {vr(V_QD+i)}, {sr(SRD_Q,4)}, {sr(QO[qb])} offen" + (f" offset:{1024*i}" if i else "") + o.get('q_flags', '') + " lds", f'q{qb}')] for i in range(4)]
            if qb:
                g[0] = [(f"s_add_u32 m0, {sr(S_DMAB)}, {QSLICE[qb]}", None), (f"s_add_u32 {sr(QO[qb])}, {sr(S_ROW)}, {4096*qb}", None)] + g[0]
            return g
        def grp(kind, stage, soff, tag):
            g = [[(self.dma(kind, i), tag)] for i in range(4)]
            g[0] = [(x, None) for x in self.base(kind, soff)] + [(self.m0(kind, stage), None), ("s_nop 0", None)] + g[0]
            return g
        self.grp = grp
        def mix(work, loads):
            n = len(loads); k = 0
            for i, x in enumerate(work):
                while k < n and k * len(work) <= i * n:
                    self.emit_load(loads[k]); k += 1
                e(x)
            while k < n:
                self.emit_load(loads[k]); k += 1
        init = []
        a = init.append
        a(f"s_lshl_b32 {sr(S_HEAD)}, {sr(S_HEAD)}, 8")
        a(f"s_add_u32 {sr(S_DMAV)}, {sr(S_DMAB)}, {LDS_V}")
        a(f"s_mov_b32 {sr(SRD_O+2)}, {Q_BYTES}")
        a(f"s_mov_b32 {sr(SRD_O+3)}, 0x20000")
        a(f"v_lshl_add_u32 {vr(V_DK)}, v3, 12, v11")
        a(f"v_lshl_add_u32 {vr(V_KA)}, v4, 8, v11")
        a("v_lshlrev_b32 v1, 1, v3")
        a("v_xor_b32 v1, v4, v1")
        a("v_lshlrev_b32 v1, 4, v1")
        a(f"v_lshl_add_u32 {vr(V_DVV)}, v3, 12, v1")
        for i in range(1, 4):
            a(f"v_xor_b32 v1, {64*i}, {vr(V_DK)}")
            a(f"v_add_u32 {vr(V_DK+i)}, {15360*i}, v1")
            if i % 2:
                a(f"v_xor_b32 v1, 0x80, {vr(V_DVV)}")
                a(f"v_add_u32 {vr(V_DVV+i)}, {15360*i}, v1")
            else:
                a(f"v_add_u32 {vr(V_DVV+i)}, {15360*i}, {vr(V_DVV)}")
        a(f"v_lshlrev_b32 {vr(V_G4)}, 2, v3")
        for s in range(1, 4):
            a(f"v_xor_b32 {vr(V_KA+s)}, {64*s}, {vr(V_KA)}")
        for s in range(4):
            a(f"v_add_u32 {vr(V_QA+s)}, {sr(S_DMAB)}, {vr(V_KA+s)}")
            a(f"v_add_u32 {vr(V_QA+4+s)}, {sr(S_DMAV)}, {vr(V_KA+s)}")
        a(f"v_lshrrev_b32 v1, 2, {vr(V_LANE)}")
        a("v_and_b32 v11, 7, v1")
        a("v_lshlrev_b32 v11, 5, v11")
        a("v_lshl_add_u32 v11, v1, 8, v11")
        a("v_and_b32 v1, 3, v4")
        a("v_lshl_add_u32 v11, v1, 3, v11")
        a(f"v_add_u32 {vr(V_VA)}, {LDS_V}, v11")
        for db in range(1, 8):
            a(f"v_xor_b32 {vr(V_VA+db)}, {32*db}, {vr(V_VA)}")
        a(f"v_mov_b32 {vr(V_NINF)}, 0xff800000")
        c = (1.0/math.sqrt(128.0)) * math.log2(math.e)
        a(f"s_mov_b32 {sr(S_C)}, {hex(f32bits(c))}")
        a(f"s_mov_b32 {sr(S_C+1)}, {hex(f32bits(c))}")
        for i in range(4):
            a(f"v_mov_b32 {vr(V_P+i)}, 0")
        for i in range(4):
            a(f"v_mov_b32 {vr(V_ONES+i)}, 0x3f803f80")
        early = []
        for qb in range(o['nq_early']): early += qload(qb)
        if o.get('mixinit'):
            mix(init, early)
        else:
            mix([], early); mix(init, [])
        srdbase(SRD_O, S_PTR+10)
        if o.get('tlbo'):
            e(f"v_mov_b32 v14, {sr(S_ROW)}")
            self.vmem(f"global_load_dword v15, v14, {sr(S_PTR+10,2)}", 'tlbo')
        if o.get('stamp'):
            srdbase(SRD_D, S_PTR+14)
            e(f"s_mov_b32 {sr(SRD_D+2)}, 268435456")
            e(f"s_mov_b32 {sr(SRD_D+3)}, 0x20000")
        Z = vr(V_P, 4)
        for i in range(8):
            e(f"v_mfma_f32_32x32x16_bf16 {ar(16*i,16)}, {Z}, {Z}, 0")
        e(f"v_mfma_f32_32x32x16_bf16 {vr(V_L,16)}, {Z}, {Z}, 0")
        e(f"v_mfma_f32_32x32x16_bf16 {vr(V_P+16,16)}, {Z}, {Z}, 0")
        for i in range(4, 16):
            e(f"v_mov_b32 {vr(V_P+i)}, 0")
        e("s_waitcnt lgkmcnt(0)")
        e(f"s_cmp_le_i32 {sr(S_CL)}, 0")
        e(f"s_cselect_b32 {sr(S_ZERO)}, 1, 0")
        e(f"s_cselect_b32 {sr(S_CL)}, 0x800, {sr(S_CL)}")
        e(f"s_min_u32 {sr(S_CL)}, {sr(S_CL)}, 0x800")
        e(f"s_add_u32 {sr(S_N)}, {sr(S_CL)}, 63")
        e(f"s_lshr_b32 {sr(S_N)}, {sr(S_N)}, 6")
        e(f"s_sub_u32 {sr(S_IDX)}, {sr(S_N)}, 1")
        e(f"s_lshl_b32 {sr(S_T2)}, {sr(S_IDX)}, 6")
        e(f"s_sub_u32 {sr(S_REM)}, {sr(S_CL)}, {sr(S_T2)}")
        e(f"s_add_u32 {sr(S_END)}, {sr(S_N)}, 2")
        e("v_lshlrev_b32 v9, 2, v9")
        e(f"v_cmp_gt_u32 vcc, {sr(S_CL)}, v9")
        e(f"v_sub_u32 v10, {sr(S_REM)}, {vr(V_G4)}")
        self.vmwait('bt')
        self.stamp('bt')
        e(f"v_cndmask_b32 {vr(V_BT)}, 0, {vr(V_BT)}, vcc")
        e(f"v_min_u32 {vr(V_BT)}, 0x83, {vr(V_BT)}")
        e(f"v_lshlrev_b32 {vr(V_BT)}, 16, {vr(V_BT)}")
        e(f"v_add_u32 {vr(V_BT)}, {sr(S_HEAD)}, {vr(V_BT)}")
        e("s_nop 0")
        T0, T1, T2, T3 = S_T, S_T3, 44, S_OFF
        e(f"v_readlane_b32 {sr(T0)}, {vr(V_BT)}, {sr(S_IDX)}")
        e(f"v_readlane_b32 {sr(T1)}, {vr(V_BT)}, 0")
        e(f"v_readlane_b32 {sr(T2)}, {vr(V_BT)}, 1")
        e(f"v_readlane_b32 {sr(T3)}, {vr(V_BT)}, 2")
        e(f"s_mov_b32 {sr(S_IDX)}, 3")
        masks = [f"v_cmp_lt_i32 {sr(S_MASK+2*(4*kb+r),2)}, {16*kb+r}, v10" for kb in range(4) for r in range(4)]
        G = dict(k0=grp('K', 3, T0, 'k0'), v0=grp('V', 3, T0, 'v0'), k1=grp('K', 0, T1, 'k1'), v1=grp('V', 0, T1, 'v1'),
                 k2=grp('K', 1, T2, 'k2'), v2=grp('V', 1, T2, 'v2'), k3=grp('K', 2, T3, 'k3'))
        for qb in range(4): G[f'q{qb}'] = qload(qb)
        def loads(names):
            out = []
            for n in names.split(): out += G[n]
            return out
        def scale(qb, names=""):
            self.vmwait(f'q{qb}')
            self.stamp(f'q{qb}')
            for s in range(4):
                e(f"ds_read_b128 {vr(V_Q+16*qb+4*s,4)}, {vr(V_QA+4*(qb%2)+s)} offset:{16384*(1+qb//2)}")
            mix(self.scale_q(qb), loads(names))
            e(f"s_cmp_eq_u32 {sr(S_ZERO)}, 1")
            e(f"s_cbranch_scc1 L_zeroq{qb}")
            self.lab(f"L_zeroq_ret{qb}")
        mix(masks, loads(o['ld_a']))
        self.stamp('lda')
        v0 = [self.vread(i, 3) for i in range(32) if (i // 2) % 2 == 0]
        v1 = [self.vread(i, 3) for i in range(32) if (i // 2) % 2 == 1]
        k1 = [self.kread(f, 0) for f in range(16)]
        RD = dict(V0=v0, V1=v1, K1=k1)
        for step in o['seq'].split():
            name, _, arg = step.partition(':')
            args = [x for x in arg.split(',') if x]
            if name[0] == 's':
                scale(int(name[1]), ' '.join(args))
            elif name in 'AB':
                self.vmwait(*args)
                e("s_barrier")
                self.stamp('bar' + name)
                if name == 'A':
                    for s in range(4): e(self.kread(s, 3, temp=True))
            elif name[0] == 'Q':
                self.first_qk([int(x) for x in name[1:]], sum((RD[x] for x in args), []))
                self.stamp(name)
            elif name[0] == 'P':
                rd = sum((RD[x] for x in args if x in RD), [])
                dm = loads(' '.join(x for x in args if x not in RD))
                sh = []
                nm = 9 * (len(name) - 1)
                e("s_waitcnt lgkmcnt(4)" if '3' not in self.done_q else "s_waitcnt lgkmcnt(0)")
                e("s_nop 0")
                while rd or dm:
                    if rd: sh.append([(rd.pop(0), None), (rd.pop(0), None)])
                    elif len(sh) + 2 * len(dm) <= nm: sh.append([])
                    if dm and (len(sh) % 5 in (1, 3) or not rd): sh.append(dm.pop(0))
                self.first_pv([int(x) for x in name[1:]], sh)
                self.stamp(name)
            elif name == 'L':
                for x in loads(' '.join(args)): self.emit_load(x)
            elif name == 'R':
                for x in args:
                    for i, r in enumerate(RD[x]):
                        if i == 8: e("s_waitcnt lgkmcnt(2)")
                        e(r)
        for x in self.base('V', T3): e(x)
        self.stamp('loop')
        if o.get('stamp'): e("s_memrealtime s[24:25]")
        e("s_waitcnt lgkmcnt(0)")
        e(f"s_cmp_eq_u32 {sr(S_N)}, 1")
        e("s_cbranch_scc1 L_drain")

    def period(self, u):
        o = self.o
        NS = 136
        pat = o.get('pattern', PATTERN)
        mf = [None]*NS
        qk_end = {}; pv_first = {}; vuse = {}; kuse = {}
        for qb in range(4):
            b = 34*qb
            for k in range(16):
                mf[b + k] = self.mfma_qk(qb, k // 4, k % 4)
                qk_end[(qb, k // 4)] = b + k
            pq = (qb + 3) % 4
            mf[b+16] = self.mfma_sum(pq, 0); mf[b+17] = self.mfma_sum(pq, 1)
            for k in range(16):
                mf[b + 18 + k] = self.mfma_pv(pq, k // 2, k % 2)
        salu = [[] for _ in range(NS)]
        def put(k, x): salu[k].append(x)
        fill = [[] for _ in range(NS)]
        ne = 60; nc = 30; nv = 0; nk = 0; nd = 0
        vslot = []; kslot = []; pos = {}
        for k, tok in enumerate(pat):
            for t in tok:
                if t == 'e':
                    qb, el = (ne // 16) % 4, ne % 16
                    if ne >= 64:
                        assert k - qk_end[(qb, el // 4)] >= 4, ("exp early", k, qb, el)
                    pos[('e', ne)] = k
                    if not o.get('no_valu'): fill[k].append(self.sm_exp(qb, el))
                    ne += 1
                elif t == 'c':
                    el2 = 2*nc + 1
                    qb, el = (el2 // 16) % 4, el2 % 16
                    assert pos[('e', el2)] < k, ("cvt early", k)
                    dead = (34*((qb+1) % 4) + 16) + (136 if (qb == 3 and el2 >= 64) else 0)
                    assert k < dead - 1, ("cvt late", k, qb, el)
                    if not o.get('no_valu'): fill[k].append(self.sm_cvt(qb, el))
                    nc += 1
                elif t == 'v':
                    assert k > 18 + nv // 2, ("v early", k, nv)
                    vslot.append(k)
                    if not o.get('no_lds'): fill[k].append(self.vread(nv, u))
                    nv += 1
                elif t == 'k':
                    assert k > 102 + nk, ("k early", k, nk)
                    kslot.append(k)
                    if not o.get('no_lds'): fill[k].append(self.kread(nk, (u+1) % NST))
                    nk += 1
                elif t == 'D':
                    kind, i = ('V', nd) if nd < 4 else ('K', nd - 4)
                    pos[('D', nd)] = k
                    if not o.get('no_dma'): fill[k].append(self.dma(kind, i))
                    nd += 1
                elif t == 'r':
                    pos['r'] = k
                    fill[k].append(f"v_readlane_b32 {sr(S_OFF)}, {vr(V_BT)}, {sr(S_IDX)}")
        assert (ne, nc, nv, nk, nd) == (124, 62, 32, 16, 8), (ne, nc, nv, nk, nd)
        w1, w1frags, b = o['w1'], o['w1frags'], o['bar_slot']
        issued = sum(1 for k in vslot if k < w1)
        assert w1 <= 51 and b - 1 <= 51 + w1frags
        put(w1, f"s_waitcnt lgkmcnt({issued - 2*w1frags})")
        put(b-1, "s_waitcnt vmcnt(8) lgkmcnt(0)" if not o.get('no_dma') else "s_waitcnt lgkmcnt(0)")
        assert max(vslot) < b - 1 and min(kslot) > b and pos[('D', 4)] > b + 1 and pos[('D', 3)] < b - 1
        if not o.get('no_barrier'): put(b, "s_barrier")
        put(135, "s_waitcnt lgkmcnt(0)")
        put(pos[('D', 0)] - 2, self.m0('V', (u + NST - 1) % NST))
        put(b+1, self.m0('K', u))
        kb_ = self.base('K', S_OFF); vb_ = self.base('V', S_OFF)
        r = pos['r']
        put(r+2, kb_[0]); put(r+3, kb_[1])
        assert r + 3 < b - 1
        put(b+4, vb_[0]); put(b+5, vb_[1])
        put(b+7, f"s_add_u32 {sr(S_IDX)}, {sr(S_IDX)}, 1")
        put(b+8, f"s_cmp_eq_u32 {sr(S_IDX)}, {sr(S_END)}")
        if o.get('pstamp'):
            put(b+9, "s_memtime s[100:101]")
            fill[134].append("s_waitcnt lgkmcnt(0)")
            fill[134].append(f"v_cmp_eq_u32 vcc, {sr(S_IDX)}, {vr(V_LANE)}")
            fill[135].append("v_mov_b32 v254, s100")
            fill[135].append("v_cndmask_b32 v255, v255, v254, vcc")
        self.c(f"---- period, stage {u}")
        for k in range(NS):
            self.e(mf[k])
            assert len(salu[k]) <= 1 and not (salu[k] and 'D' in pat[k]), k
            for x in salu[k]: self.e(x)
            for x in fill[k]: self.e(x)

    def drain(self):
        e = self.e
        self.lab("L_drain")
        for el in range(12, 16): e(self.sm_exp(3, el))
        e("s_nop 0")
        for el in (13, 15): e(self.sm_cvt(3, el))
        e("s_nop 1")
        e(self.mfma_sum(3, 0)); e(self.mfma_sum(3, 1))
        for k in range(16):
            e(self.mfma_pv(3, k // 2, k % 2))

    def epilogue(self):
        e = self.e; o = self.o
        self.stamp('epi')
        if o.get('stamp'): e("s_memrealtime s[30:31]")
        T = V_KT
        WA = V_KA
        e(f"s_lshl_b32 {sr(S_T)}, {sr(S_W)}, 13")
        e(f"s_add_u32 {sr(S_T)}, {sr(S_T)}, {LDS_O}")
        e(f"v_lshrrev_b32 v1, 5, {vr(V_LANE)}")
        e("v_xor_b32 v1, v1, v4")
        e("v_lshlrev_b32 v1, 4, v1")
        e("v_lshl_add_u32 v1, v4, 8, v1")
        e("v_and_b32 v11, 1, v3")
        e("v_lshl_add_u32 v1, v11, 3, v1")
        e(f"v_add_u32 {vr(WA)}, {sr(S_T)}, v1")
        for db in range(1, 8):
            e(f"v_xor_b32 {vr(WA+db)}, {32*db}, {vr(WA)}")
        for i in range(4):
            e(f"v_add_u32 {vr(V_QD+i)}, {sr(S_T)}, {vr(V_QD+i)}")
        e(f"v_lshlrev_b32 {vr(V_OOFF)}, 4, {vr(V_LANE)}")
        for qb in range(4):
            e(f"v_rcp_f32 {vr(T+2*qb)}, {vr(V_L+4*qb)}")
        e("s_nop 0")
        for qb in range(4):
            e(f"v_mov_b32 {vr(T+2*qb+1)}, {vr(T+2*qb)}")
        RB = 128
        def readback(qb):
            return [f"ds_read_b128 {vr(RB+16*qb+4*i,4)}, {vr(V_QD+i)} offset:{4096*(qb%2)+1024*i}" for i in range(4)]
        def store(qb, i):
            return f"buffer_store_dwordx4 {vr(RB+16*qb+4*i,4)}, {vr(V_OOFF)}, {sr(SRD_O,4)}, {sr(self.QO[qb])} offen" + (f" offset:{1024*i}" if i else "") + o.get('st_flags', '')
        n = 0
        for qb in range(4):
            for p in range(4):
                W = 16 + 16*(n % 4); n += 1
                for i in range(8):
                    e(f"v_accvgpr_read_b32 {vr(W+i)}, {ar(A_O+32*qb+8*p+i)}")
                if qb and p == 1:
                    e("s_waitcnt lgkmcnt(2)")
                if qb and p >= 1:
                    e(store(qb-1, p-1))
                    if p == 3: e(store(qb-1, 3))
                for i in range(4):
                    e(f"v_pk_mul_f32 {vr(W+2*i,2)}, {vr(W+2*i,2)}, {vr(T+2*qb,2)}")
                for i in range(4):
                    e(f"v_cvt_pk_bf16_f32 {vr(W+8+i)}, {vr(W+2*i)}, {vr(W+2*i+1)}")
                for h in range(2):
                    e(f"ds_write_b64 {vr(WA+2*p+h)}, {vr(W+8+2*h,2)} offset:{4096*(qb%2)}")
            for x in readback(qb): e(x)
        for i in range(4):
            e(f"s_waitcnt lgkmcnt({3-i})")
            e(store(3, i))
        if o.get('stamp'):
            self.stamp('stored')
            e("s_waitcnt vmcnt(0)")
            e("s_memtime s[62:63]")
            e("s_memrealtime s[64:65]")
            e("s_getreg_b32 s66, hwreg(HW_REG_XCC_ID)")
            e("s_getreg_b32 s67, hwreg(HW_REG_HW_ID)")
            e("s_waitcnt lgkmcnt(0)")
            e("v_mov_b32 v16, 0")
            n = self.nst
            for k in range(n):
                e(f"v_writelane_b32 v16, {sr(STAMP_REG[k])}, {k}")
            for k, r in enumerate((62, 64, 66, 67, 94, 24, 30)):
                e(f"v_writelane_b32 v16, s{r}, {n+k}")
            e(f"s_lshl_b32 {sr(S_T)}, s2, 2")
            e(f"s_add_u32 {sr(S_T)}, {sr(S_T)}, {sr(S_W)}")
            e(f"s_lshl_b32 {sr(S_T)}, {sr(S_T)}, 8")
            e(f"v_lshlrev_b32 v17, 2, {vr(V_LANE)}")
            e(f"buffer_store_dword {'v255' if o.get('pstamp') else 'v16'}, v17, {sr(SRD_D,4)}, {sr(S_T)} offen")
        self.lab("L_end")
        e("s_endpgm")
        for qb in range(4):
            self.lab(f"L_zeroq{qb}")
            for i in range(16):
                e(f"v_mov_b32 {vr(V_Q+16*qb+i)}, 0")
            e("s_nop 1")
            e(f"s_branch L_zeroq_ret{qb}")
        self.lab("L_code_end")

    def build(self):
        self.prologue()
        if self.o.get('align'):
            self.L.append(f".p2align {self.o['align']}")
        self.lab("L_loop")
        for j in range(NST):
            self.period(j)
            if j < NST - 1:
                self.e("s_cbranch_scc1 L_drain")
            else:
                self.e("s_cbranch_scc0 L_loop")
        self.drain()
        self.epilogue()
        body = "\n".join(self.L)
        return (HEADER + f"; @launch grid=(256,1,1) block=(256,1,1) lds={LDS_O+32768}\n"
                ".amdgcn_target \"amdgcn-amd-amdhsa--gfx950\"\n.text\n"
                f".globl {NAME}_kernel\n.p2align 8\n.type {NAME}_kernel,@function\n{NAME}_kernel:\n"
                + body + "\n"
                ".section .rodata,\"a\"\n.p2align 6\n"
                f".amdhsa_kernel {NAME}_kernel\n"
                "  .amdhsa_next_free_vgpr 512\n  .amdhsa_next_free_sgpr 102\n  .amdhsa_accum_offset 256\n"
                "  .amdhsa_group_segment_fixed_size 0\n  .amdhsa_kernarg_size 64\n  .amdhsa_user_sgpr_count 2\n"
                "  .amdhsa_user_sgpr_kernarg_segment_ptr 1\n  .amdhsa_system_sgpr_workgroup_id_x 1\n"
                ".end_amdhsa_kernel\n")


DEFAULT = dict(stamps=['start','karg','bt','issued','prebar','loop','epi','stored'], w1=51, w1frags=11, bar_slot=63, nq_early=2, ld_a='k0 v0', seq='s0:q2 s1:q3 A:k0,v0 Q01:V0 P01:V1,k1,v1 s2 Q2 P2:k2 B:k1,v1 R:K1 s3:v2,k3 Q3', pf=True, st_flags=' sc0 sc1 nt')

def parse_opts(args):
    o = dict(DEFAULT)
    for a in args:
        k, _, v = a.partition("=")
        if v == "": o[k] = True
        else:
            try: o[k] = eval(v)
            except Exception: o[k] = v
    return o

if __name__ == "__main__":
    o = parse_opts(sys.argv[2:])
    open(sys.argv[1], "w").write(Gen(o).build())
```

```python
import sys, struct, math

NAME = "standalone__paged_block_table_kv_pagedattention__prompt"

HEADER = """; Kernarg layout for this problem (64 bytes, ptrs only, base s[0:1]):
"""

def f32bits(x):
    return struct.unpack("<I", struct.pack("<f", x))[0]

S_W = 3; S_CL = 4; S_N = 5; S_REM = 6; S_T = 7; S_IDX = 8; S_END = 9
S_OFF = 10; S_T3 = 11; S_DMAB = 12; S_DMAV = 13; S_ROW = 14; S_HEAD = 15
S_PTR = 16
P_K = 18; P_V = 20
S_C = 32
S_T2 = 34; S_ZERO = 35
SRD_Q = 36; S_KB = 40; S_VB = 42; SRD_X = 44; SRD_O = 48; SRD_BT = 52; SRD_D = 56
S_MASK = 60
STAMP_REG = [92, 96, 98, 100, 16, 36, 26, 28, 52, 54]
V_LANE = 2
V_S = 16; V_P = 80; V_NEGM = 112; V_Q = 128
V_KA = 192; V_VA = 196; V_DK = 204; V_DVV = 208; V_BT = 212
V_OOFF = 213; V_G4 = 214; V_NINF = 215; V_L = 216; V_ONES = 232; V_KT = 236
V_MS = [12, 14, 252, 254]
V_IDX = V_OOFF
V_QD = 5
V_QA = 120
QSLICE = [16384, 65536 + 16384, 32768, 65536 + 32768]
LDS_O = 131072
A_O = 0; A_K = 128; A_V = 192

NST = 3
LDS_V = 65536
KV_BYTES = 132 * 65536
Q_BYTES = 16777216

def vr(b, n=1): return f"v{b}" if n == 1 else f"v[{b}:{b+n-1}]"
def ar(b, n=1): return f"a{b}" if n == 1 else f"a[{b}:{b+n-1}]"
def sr(b, n=1): return f"s{b}" if n == 1 else f"s[{b}:{b+n-1}]"
MF = "v_mfma_f32_16x16x32_bf16"

PATTERN = (
    "e e c D e e c D e e c D e e c D e e "
    "vc vv e vv e vc vv e vv e vc vv e vv e vc vv e vv e vc vv e vv e vc vv e vv e vc v "
    "e e cr e e c e e - c D e e c e e c D e e c e e c "
    "D e e c - e e c D e - e c e - e c e - e c e - e c e "
    "k e kc e kk e kc kk e kk e kc e kk e kc e kk e kc e - e c e e c e - e c -"
).split()
NS = 132
assert len(PATTERN) == NS, len(PATTERN)
def kpos(j):
    kb, s = j // 4, j % 4
    return kb, (3 - s if kb % 2 else s)
def vpos(j):
    db, ks = j // 2, j % 2
    return db, (1 - ks if db % 2 else ks)


class Gen:
    def __init__(self, opt):
        self.o = opt
        self.L = []
        self.nst = 0
        self.vm = []
    def e(self, s): self.L.append("    " + s)
    def lab(self, s): self.L.append(s + ":")
    def c(self, s): self.L.append("    ; " + s)
    def vmem(self, s, tag):
        self.e(s); self.vm.append(tag)
    def vmwait(self, *tags):
        last = max(i for i, t in enumerate(self.vm) if t in tags)
        self.e(f"s_waitcnt vmcnt({len(self.vm) - 1 - last})")

    def mfma_qk(self, qb, kb, s, first=False, head=None):
        d = vr(V_S + 16*qb + 4*kb, 4)
        if head is None: head = s == 0
        c = d if not head else ("0" if first else vr(V_NEGM + 4*qb, 4))
        a = vr(V_KT + 4*s, 4) if first else ar(A_K + 4*(4*kb+s), 4)
        return f"{MF} {d}, {a}, {vr(V_Q+16*qb+4*s,4)}, {c}"
    def mfma_pv(self, qb, db, ks):
        d = ar(A_O + 32*qb + 4*db, 4)
        return f"{MF} {d}, {ar(A_V+4*(2*db+ks),4)}, {vr(V_P+8*qb+4*ks,4)}, {d}"
    def mfma_sum(self, qb):
        return f"v_smfmac_f32_16x16x64_bf16 {vr(V_L+4*qb,4)}, {vr(V_ONES,4)}, {vr(V_P+8*qb,8)}, {vr(V_IDX)}"
    def kread(self, f, stage, temp=False):
        kb, s = f // 4, f % 4
        d = vr(V_KT + 4*s, 4) if temp else ar(A_K + 4*f, 4)
        return f"ds_read_b128 {d}, {vr(V_KA+s)} offset:{stage*16384+kb*4096}"
    def vread(self, i, stage):
        f, u = i // 2, i % 2
        db, ks = f // 2, f % 2
        return f"ds_read_b64_tr_b16 {ar(A_V+4*f+2*u,2)}, {vr(V_VA+db)} offset:{stage*16384+(32*ks+16*u)*256}"
    def dma(self, kind, i):
        v, b = (V_DK, S_KB) if kind == 'K' else (V_DVV, S_VB)
        return f"global_load_lds_dwordx4 {vr(v+i)}, {sr(b,2)}" + (f" offset:{1024*i}" if i else "") + self.o.get('ld_flags', '')
    def m0(self, kind, stage):
        return f"s_add_u32 m0, {sr(S_DMAB if kind == 'K' else S_DMAV)}, {stage*16384}"
    def base(self, kind, soff):
        b, p = (S_KB, P_K) if kind == 'K' else (S_VB, P_V)
        return [f"s_add_u32 {sr(b)}, {sr(p)}, {sr(soff)}", f"s_addc_u32 {sr(b+1)}, {sr(p+1)}, 0"]
    def sm_exp(self, qb, e):
        r = V_S + 16*qb + e
        return f"v_exp_f32 {vr(r)}, {vr(r)}"
    def sm_cvt(self, qb, e):
        r = V_S + 16*qb + e
        return f"v_cvt_pk_bf16_f32 {vr(V_P+8*qb+e//2)}, {vr(r-1)}, {vr(r)}"
    def stamp(self, name):
        if self.o.get('stamp') and name in self.o['stamps']:
            self.e(f"s_memtime {sr(STAMP_REG[self.nst],2)}")
            self.nst += 1
    def group(self, kind, stage, soff, tag):
        for x in self.base(kind, soff): self.e(x)
        self.e(self.m0(kind, stage))
        self.e("s_nop 0")
        for i in range(4): self.vmem(self.dma(kind, i), tag)
        self.stamp('i' + tag)

    def emit_load(self, item):
        for x, tag in item:
            if tag: self.vmem(x, tag)
            else: self.e(x)

    def scale_q(self, qb):
        out = []; e = out.append
        for s in range(4):
            TA = V_S + 16*qb + 8*(s % 2)
            e(f"s_waitcnt lgkmcnt({3-s})")
            for i in range(4):
                q = V_Q + 16*qb + 4*s + i
                e(f"v_lshlrev_b32 {vr(TA+2*i)}, 16, {vr(q)}")
                e(f"v_and_b32 {vr(TA+2*i+1)}, 0xffff0000, {vr(q)}")
            for i in range(4):
                e(f"v_pk_mul_f32 {vr(TA+2*i,2)}, {vr(TA+2*i,2)}, {sr(S_C,2)}")
            for i in range(4):
                q = V_Q + 16*qb + 4*s + i
                e(f"v_cvt_pk_bf16_f32 {vr(q)}, {vr(TA+2*i)}, {vr(TA+2*i+1)}")
        return out

    def first_qk(self, blocks, shadow=()):
        e = self.e; tag = ''.join(map(str, blocks))
        self.done_q += tag
        tag += self.sfx
        M = {qb: V_MS[qb] for qb in blocks}
        shadow = list(shadow)
        if 3 in blocks:
            for i in range(4):
                e(f"v_mov_b32 {vr(V_S+48+12+i)}, {vr(V_NINF)}")
        for kb in range(4):
            if kb:
                e(f"s_cmp_le_u32 {sr(S_REM)}, {16*kb}")
                e(f"s_cbranch_scc1 L_fa{tag}")
                for s in range(4): e(self.kread(4*kb+s, 3, temp=True))
            e("s_waitcnt lgkmcnt(0)")
            if kb == 0: e("s_nop 0")
            for qb in blocks:
                for s in range(4):
                    e(self.mfma_qk(qb, kb, s, first=True))
                    if kb == 0:
                        for _ in range(2):
                            if shadow: e(shadow.pop(0))
            if kb == 0 and shadow:
                e("s_waitcnt lgkmcnt(6)")
                n = len(shadow)
                while shadow: e(shadow.pop(0))
                if n < 7 and len(blocks) < 3: e(f"s_nop {7-n}")
            elif len(blocks) < 3:
                e("s_nop 7")
            for qb in blocks:
                S = V_S + 16*qb + 4*kb
                for r in range(4):
                    e(f"v_cndmask_b32 {vr(S+r)}, {vr(V_NINF)}, {vr(S+r)}, {sr(S_MASK+2*(4*kb+r),2)}")
                if kb == 0:
                    e(f"v_max3_f32 {vr(M[qb])}, {vr(S)}, {vr(S+1)}, {vr(S+2)}")
                    e(f"v_max_f32 {vr(M[qb])}, {vr(M[qb])}, {vr(S+3)}")
                else:
                    e(f"v_max3_f32 {vr(M[qb])}, {vr(M[qb])}, {vr(S)}, {vr(S+1)}")
                    e(f"v_max3_f32 {vr(M[qb])}, {vr(M[qb])}, {vr(S+2)}, {vr(S+3)}")
        self.lab(f"L_fa{tag}")
        if 3 not in blocks:
            for s in range(4): e(self.kread(s, 3, temp=True))
        for sw in ("v_permlane32_swap_b32", "v_permlane16_swap_b32"):
            for qb in blocks: e(f"v_mov_b32 {vr(M[qb]+1)}, {vr(M[qb])}")
            e("s_nop 1" if len(blocks) < 2 else "s_nop 0")
            for qb in blocks: e(f"{sw} {vr(M[qb])}, {vr(M[qb]+1)}")
            for qb in blocks: e(f"v_max_f32 {vr(M[qb])}, {vr(M[qb])}, {vr(M[qb]+1)}")
        for qb in blocks:
            for r in range(4):
                e(f"v_sub_f32 {vr(V_NEGM+4*qb+r)}, 0, {vr(M[qb])}")
        for kb in range(4):
            if kb:
                e(f"s_cmp_le_u32 {sr(S_REM)}, {16*kb}")
                e(f"s_cbranch_scc1 L_fb{tag}")
            for qb in blocks:
                S = V_S + 16*qb + 4*kb
                for r in range(4):
                    e(f"v_sub_f32 {vr(S+r)}, {vr(S+r)}, {vr(M[qb])}")
                if kb == 3 and qb == 3:
                    continue
                for r in range(4):
                    e(self.sm_exp(qb, 4*kb+r))
            if len(blocks) < 2: e("s_nop 0")
            for qb in blocks:
                if kb == 3 and qb == 3:
                    continue
                for r in (1, 3):
                    e(self.sm_cvt(qb, 4*kb+r))
        self.lab(f"L_fb{tag}")

    def first_pv(self, blocks, shadow):
        e = self.e; tag = ''.join(map(str, blocks)) + self.sfx
        shadow = list(shadow)
        for ks in range(2):
            if ks:
                e("s_waitcnt lgkmcnt(0)")
                e(f"s_cmp_le_u32 {sr(S_REM)}, 32")
                e(f"s_cbranch_scc1 L_fc{tag}")
            for qb in blocks:
                for x in ([self.mfma_sum(qb)] if ks == 0 else []) + [self.mfma_pv(qb, db, ks) for db in range(8)]:
                    e(x)
                    if ks == 0 and shadow: self.emit_load(shadow.pop(0))
            if ks == 0:
                while shadow: self.emit_load(shadow.pop(0))
        self.lab(f"L_fc{tag}")

    def prologue(self):
        e = self.e; o = self.o
        e("s_cmp_ge_u32 s2, 256")
        e("s_cbranch_scc1 L_end")
        e(f"s_load_dwordx16 {sr(S_PTR,16)}, s[0:1], 0")
        self.stamp('start')
        if o.get('stamp'):
            e("s_memrealtime s[94:95]")
        if o.get('pf'):
            e("s_getpc_b64 s[66:67]")
            self.lab("L_pc")
            e("v_lshlrev_b32 v14, 7, v0")
            e("v_min_u32 v14, L_code_end-L_pc-4, v14")
            self.vmem("global_load_dword v15, v14, s[66:67]", 'pf')
        e("v_lshrrev_b32 v1, 6, v0")
        e(f"v_and_b32 {vr(V_LANE)}, 63, v0")
        e(f"v_readfirstlane_b32 {sr(S_W)}, v1")
        e(f"s_and_b32 {sr(S_T)}, s2, 7")
        e(f"s_lshl_b32 {sr(S_T)}, {sr(S_T)}, 1")
        e(f"s_bfe_u32 {sr(S_HEAD)}, s2, 0x10003")
        e(f"s_add_u32 {sr(S_HEAD)}, {sr(S_HEAD)}, {sr(S_T)}")
        e(f"s_lshr_b32 {sr(S_T)}, s2, 4")
        e(f"s_lshl4_add_u32 {sr(S_ROW)}, {sr(S_HEAD)}, {sr(S_T)}")
        e(f"s_lshl2_add_u32 {sr(S_ROW)}, {sr(S_ROW)}, {sr(S_W)}")
        e(f"s_lshl_b32 {sr(S_ROW)}, {sr(S_ROW)}, 14")
        e(f"s_lshl_b32 {sr(S_DMAB)}, {sr(S_W)}, 12")
        e(f"v_lshrrev_b32 v3, 4, {vr(V_LANE)}")
        e(f"v_and_b32 v4, 15, {vr(V_LANE)}")
        e("v_xor_b32 v11, v4, v3")
        e("v_lshlrev_b32 v11, 4, v11")
        e(f"v_lshl_add_u32 {vr(V_QD)}, v3, 8, v11")
        e(f"v_and_b32 v9, 31, {vr(V_LANE)}")
        e(f"s_lshl_b32 {sr(S_T2)}, {sr(S_W)}, 2")
        e(f"v_lshl_add_u32 v9, v9, 4, {sr(S_T2)}")
        e(f"s_mov_b32 {sr(SRD_BT+2)}, 512")
        e(f"s_mov_b32 {sr(SRD_BT+3)}, 0x20000")
        e(f"s_mov_b32 {sr(SRD_Q+2)}, {Q_BYTES}")
        e(f"s_mov_b32 {sr(SRD_Q+3)}, 0x20000")
        for i in range(1, 4):
            e(f"v_xor_b32 {vr(V_QD+i)}, {64*i}, {vr(V_QD)}")
        e(f"s_add_u32 m0, {sr(S_DMAB)}, {QSLICE[0]}")
        e("s_waitcnt lgkmcnt(0)")
        self.stamp('karg')
        def srdbase(b, p):
            e(f"s_mov_b32 {sr(b)}, {sr(p)}")
            e(f"s_and_b32 {sr(b+1)}, {sr(p+1)}, 0xffff")
        srdbase(SRD_BT, S_PTR+6)
        self.vmem(f"buffer_load_dword {vr(V_BT)}, v9, {sr(SRD_BT,4)}, 0 offen", 'bt')
        e(f"s_load_dword {sr(S_CL)}, {sr(S_PTR+8,2)}, 0")
        srdbase(SRD_Q, S_PTR+0)
        if o.get('tlb'):
            e(f"v_and_b32 v14, 7, {vr(V_LANE)}")
            e(f"v_lshlrev_b32 v14, 20, v14")
            self.vmem(f"global_load_dword v15, v14, {sr(P_K,2)}", 'tlb')
            self.vmem(f"global_load_dword v15, v14, {sr(P_V,2)}", 'tlb')
        QO = [S_ROW, 45, 46, 47]
        self.QO = QO
        def qload(qb, first=False):
            g = [[(f"buffer_load_dwordx4 {vr(V_QD+i)}, {sr(SRD_Q,4)}, {sr(QO[qb])} offen" + (f" offset:{1024*i}" if i else "") + o.get('q_flags', '') + " lds", f'q{qb}')] for i in range(4)]
            if not first:
                g[0] = [(f"s_add_u32 m0, {sr(S_DMAB)}, {QSLICE[qb]}", None), (f"s_add_u32 {sr(QO[qb])}, {sr(S_ROW)}, {4096*qb}", None)] + g[0]
            return g
        def grp(kind, stage, soff, tag):
            g = [[(self.dma(kind, i), tag)] for i in range(4)]
            g[0] = [(x, None) for x in self.base(kind, soff)] + [(self.m0(kind, stage), None), ("s_nop 0", None)] + g[0]
            return g
        self.grp = grp
        def mix(work, loads):
            n = len(loads); k = 0
            for i, x in enumerate(work):
                while k < n and k * len(work) <= i * n:
                    self.emit_load(loads[k]); k += 1
                e(x)
            while k < n:
                self.emit_load(loads[k]); k += 1
        init = []
        a = init.append
        a(f"s_lshl_b32 {sr(S_HEAD)}, {sr(S_HEAD)}, 8")
        a(f"s_add_u32 {sr(S_DMAV)}, {sr(S_DMAB)}, {LDS_V}")
        a(f"s_mov_b32 {sr(SRD_O+2)}, {Q_BYTES}")
        a(f"s_mov_b32 {sr(SRD_O+3)}, 0x20000")
        a(f"v_lshl_add_u32 {vr(V_DK)}, v3, 12, v11")
        a(f"v_lshl_add_u32 {vr(V_KA)}, v4, 8, v11")
        a("v_lshlrev_b32 v1, 1, v3")
        a("v_xor_b32 v1, v4, v1")
        a("v_lshlrev_b32 v1, 4, v1")
        a(f"v_lshl_add_u32 {vr(V_DVV)}, v3, 12, v1")
        for i in range(1, 4):
            a(f"v_xor_b32 v1, {64*i}, {vr(V_DK)}")
            a(f"v_add_u32 {vr(V_DK+i)}, {15360*i}, v1")
            if i % 2:
                a(f"v_xor_b32 v1, 0x80, {vr(V_DVV)}")
                a(f"v_add_u32 {vr(V_DVV+i)}, {15360*i}, v1")
            else:
                a(f"v_add_u32 {vr(V_DVV+i)}, {15360*i}, {vr(V_DVV)}")
        a(f"v_lshlrev_b32 {vr(V_G4)}, 2, v3")
        for s in range(1, 4):
            a(f"v_xor_b32 {vr(V_KA+s)}, {64*s}, {vr(V_KA)}")
        for s in range(4):
            a(f"v_add_u32 {vr(V_QA+s)}, {sr(S_DMAB)}, {vr(V_KA+s)}")
            a(f"v_add_u32 {vr(V_QA+4+s)}, {sr(S_DMAV)}, {vr(V_KA+s)}")
        a(f"v_lshrrev_b32 v1, 2, {vr(V_LANE)}")
        a("v_and_b32 v11, 7, v1")
        a("v_lshlrev_b32 v11, 5, v11")
        a("v_lshl_add_u32 v11, v1, 8, v11")
        a("v_and_b32 v1, 3, v4")
        a("v_lshl_add_u32 v11, v1, 3, v11")
        a(f"v_add_u32 {vr(V_VA)}, {LDS_V}, v11")
        for db in range(1, 8):
            a(f"v_xor_b32 {vr(V_VA+db)}, {32*db}, {vr(V_VA)}")
        a(f"v_mov_b32 {vr(V_NINF)}, 0xff800000")
        c = (1.0/math.sqrt(128.0)) * math.log2(math.e)
        a(f"s_mov_b32 {sr(S_C)}, {hex(f32bits(c))}")
        a(f"s_mov_b32 {sr(S_C+1)}, {hex(f32bits(c))}")
        for i in range(4):
            a(f"v_mov_b32 {vr(V_P+i)}, 0")
        for i in range(4):
            a(f"v_mov_b32 {vr(V_ONES+i)}, 0x3f803f80")
        a(f"v_and_b32 v1, 1, {vr(V_LANE)}")
        a(f"v_mul_u32_u24 v1, 0xaaaa, v1")
        a(f"v_add_u32 v1, 0x4444, v1")
        a(f"v_lshl_or_b32 {vr(V_IDX)}, v1, 16, v1")
        variants = [dict(nq_early=o['nq_early'], ld_a=o['ld_a'], seq=o['seq'])]
        if o.get('seq2'):
            variants.append(dict(nq_early=o['nq_early2'], ld_a=o['ld_a2'], seq=o['seq2']))
            e(f"s_bitcmp1_b32 s2, {o['kindbit']}")
            e("s_cbranch_scc1 L_var1")
        vm0, nst0 = list(self.vm), self.nst
        self.sfxs = []
        def variant(V):
            early = []
            for qb in range(V['nq_early']): early += qload(qb, qb == 0)
            if o.get('mixinit'):
                mix(init, early)
            else:
                mix([], early); mix(init, [])
            srdbase(SRD_O, S_PTR+10)
            if o.get('tlbo'):
                e(f"v_mov_b32 v14, {sr(S_ROW)}")
                self.vmem(f"global_load_dword v15, v14, {sr(S_PTR+10,2)}", 'tlbo')
            if o.get('stamp'):
                srdbase(SRD_D, S_PTR+14)
                e(f"s_mov_b32 {sr(SRD_D+2)}, 268435456")
                e(f"s_mov_b32 {sr(SRD_D+3)}, 0x20000")
            Z = vr(V_P, 4)
            for i in range(8):
                e(f"v_mfma_f32_32x32x16_bf16 {ar(16*i,16)}, {Z}, {Z}, 0")
            e(f"v_mfma_f32_32x32x16_bf16 {vr(V_L,16)}, {Z}, {Z}, 0")
            e(f"v_mfma_f32_32x32x16_bf16 {vr(V_P+16,16)}, {Z}, {Z}, 0")
            for i in range(4, 16):
                e(f"v_mov_b32 {vr(V_P+i)}, 0")
            e("s_waitcnt lgkmcnt(0)")
            e(f"s_cmp_le_i32 {sr(S_CL)}, 0")
            e(f"s_cselect_b32 {sr(S_ZERO)}, 1, 0")
            e(f"s_cselect_b32 {sr(S_CL)}, 0x800, {sr(S_CL)}")
            e(f"s_min_u32 {sr(S_CL)}, {sr(S_CL)}, 0x800")
            e(f"s_add_u32 {sr(S_N)}, {sr(S_CL)}, 63")
            e(f"s_lshr_b32 {sr(S_N)}, {sr(S_N)}, 6")
            e(f"s_sub_u32 {sr(S_IDX)}, {sr(S_N)}, 1")
            e(f"s_lshl_b32 {sr(S_T2)}, {sr(S_IDX)}, 6")
            e(f"s_sub_u32 {sr(S_REM)}, {sr(S_CL)}, {sr(S_T2)}")
            e(f"s_add_u32 {sr(S_END)}, {sr(S_N)}, 2")
            e("v_lshlrev_b32 v9, 2, v9")
            e(f"v_cmp_gt_u32 vcc, {sr(S_CL)}, v9")
            e(f"v_sub_u32 v10, {sr(S_REM)}, {vr(V_G4)}")
            self.vmwait('bt')
            self.stamp('bt')
            e(f"v_cndmask_b32 {vr(V_BT)}, 0, {vr(V_BT)}, vcc")
            e(f"v_min_u32 {vr(V_BT)}, 0x83, {vr(V_BT)}")
            e(f"v_lshlrev_b32 {vr(V_BT)}, 16, {vr(V_BT)}")
            e(f"v_add_u32 {vr(V_BT)}, {sr(S_HEAD)}, {vr(V_BT)}")
            e("s_nop 0")
            T0, T1, T2, T3 = S_T, S_T3, 44, S_OFF
            e(f"v_readlane_b32 {sr(T0)}, {vr(V_BT)}, {sr(S_IDX)}")
            e(f"v_readlane_b32 {sr(T1)}, {vr(V_BT)}, 0")
            e(f"v_readlane_b32 {sr(T2)}, {vr(V_BT)}, 1")
            e(f"v_readlane_b32 {sr(T3)}, {vr(V_BT)}, 2")
            e(f"s_mov_b32 {sr(S_IDX)}, 3")
            masks = [f"v_cmp_lt_i32 {sr(S_MASK+2*(4*kb+r),2)}, {16*kb+r}, v10" for kb in range(4) for r in range(4)]
            G = dict(k0=grp('K', 3, T0, 'k0'), v0=grp('V', 3, T0, 'v0'), k1=grp('K', 0, T1, 'k1'), v1=grp('V', 0, T1, 'v1'),
                     k2=grp('K', 1, T2, 'k2'), v2=grp('V', 1, T2, 'v2'), k3=grp('K', 2, T3, 'k3'))
            for qb in range(4): G[f'q{qb}'] = qload(qb)
            def loads(names):
                out = []
                for n in names.split(): out += G[n]
                return out
            def scale(qb, names=""):
                self.vmwait(f'q{qb}')
                self.stamp(f'q{qb}')
                for s in range(4):
                    e(f"ds_read_b128 {vr(V_Q+16*qb+4*s,4)}, {vr(V_QA+4*(qb%2)+s)} offset:{16384*(1+qb//2)}")
                mix(self.scale_q(qb), loads(names))
                e(f"s_cmp_eq_u32 {sr(S_ZERO)}, 1")
                e(f"s_cbranch_scc1 L_zeroq{qb}{self.sfx}")
                self.lab(f"L_zeroq_ret{qb}{self.sfx}")
            mix(masks, loads(V['ld_a']))
            self.stamp('lda')
            v0 = [self.vread(i, 3) for i in range(32) if (i // 2) % 2 == 0]
            v1 = [self.vread(i, 3) for i in range(32) if (i // 2) % 2 == 1]
            k1 = [self.kread(f, 0) for f in range(16)]
            RD = dict(V0=v0, V1=v1, K1=k1)
            for step in V['seq'].split():
                name, _, arg = step.partition(':')
                args = [x for x in arg.split(',') if x]
                if name[0] == 's':
                    scale(int(name[1]), ' '.join(args))
                elif name in 'AB':
                    self.vmwait(*args)
                    e("s_barrier")
                    self.stamp('bar' + name)
                    if name == 'A':
                        for s in range(4): e(self.kread(s, 3, temp=True))
                elif name[0] == 'Q':
                    self.first_qk([int(x) for x in name[1:]], sum((RD[x] for x in args), []))
                    self.stamp(name)
                elif name[0] == 'P':
                    rd = sum((RD[x] for x in args if x in RD), [])
                    dm = loads(' '.join(x for x in args if x not in RD))
                    sh = []
                    nm = 9 * (len(name) - 1)
                    e("s_waitcnt lgkmcnt(4)" if '3' not in self.done_q else "s_waitcnt lgkmcnt(0)")
                    e("s_nop 0")
                    while rd or dm:
                        if rd: sh.append([(rd.pop(0), None), (rd.pop(0), None)])
                        elif len(sh) + 2 * len(dm) <= nm: sh.append([])
                        if dm and (len(sh) % 5 in (1, 3) or not rd): sh.append(dm.pop(0))
                    self.first_pv([int(x) for x in name[1:]], sh)
                    self.stamp(name)
                elif name == 'L':
                    for x in loads(' '.join(args)): self.emit_load(x)
                elif name == 'R':
                    for x in args:
                        for i, r in enumerate(RD[x]):
                            if i == 8: e("s_waitcnt lgkmcnt(2)")
                            e(r)
            for x in self.base('V', T3): e(x)
        for vi in reversed(range(len(variants))):
            self.vm, self.nst, self.done_q, self.sfx = list(vm0), nst0, '', f"_{vi}"
            self.sfxs.append(self.sfx)
            if vi == 1:
                save = self.L; self.L = []
                self.lab("L_var1")
                variant(variants[1])
                e("s_branch L_join")
                self.var1 = self.L; self.L = save
            else:
                variant(variants[0])
        self.lab("L_join")
        self.stamp('loop')
        if o.get('stamp'): e("s_memrealtime s[24:25]")
        e("s_waitcnt lgkmcnt(0)")
        e(f"s_cmp_eq_u32 {sr(S_N)}, 1")
        e("s_cbranch_scc1 L_drain")

    def period(self, u):
        o = self.o
        G = NS // 4
        pat = o.get('pattern', PATTERN)
        mf = [None]*NS
        qk_end = {}
        for qb in range(4):
            b = G*qb
            for k in range(16):
                kb, s = kpos(k)
                mf[b + k] = self.mfma_qk(qb, kb, s, head=(k % 4 == 0))
                qk_end[(qb, kb)] = b + k
            pq = (qb + 3) % 4
            mf[b+16] = self.mfma_sum(pq)
            for k in range(16):
                mf[b + 17 + k] = self.mfma_pv(pq, *vpos(k))
        salu = [[] for _ in range(NS)]
        def put(k, x): salu[k].append(x)
        fill = [[] for _ in range(NS)]
        ne = 60; nc = 30; nv = 0; nk = 0; nd = 0
        vslot = []; kslot = []; pos = {}
        for k, tok in enumerate(pat):
            for t in tok:
                if t == 'e':
                    qb, el = (ne // 16) % 4, ne % 16
                    if ne >= 64:
                        assert k - qk_end[(qb, el // 4)] >= 4, ("exp early", k, qb, el)
                    pos[('e', ne)] = k
                    if not o.get('no_valu'): fill[k].append(self.sm_exp(qb, el))
                    ne += 1
                elif t == 'c':
                    el2 = 2*nc + 1
                    qb, el = (el2 // 16) % 4, el2 % 16
                    assert pos[('e', el2)] < k, ("cvt early", k)
                    dead = (G*((qb+1) % 4) + 16) + (NS if (qb == 3 and el2 >= 64) else 0)
                    assert k < dead - 1, ("cvt late", k, qb, el)
                    if not o.get('no_valu'): fill[k].append(self.sm_cvt(qb, el))
                    nc += 1
                elif t == 'v':
                    assert k > 17 + nv // 2, ("v early", k, nv)
                    vslot.append(k)
                    db, ks = vpos(nv // 2)
                    if not o.get('no_lds'): fill[k].append(self.vread(2*(2*db+ks) + nv % 2, u))
                    nv += 1
                elif t == 'k':
                    assert k > 3*G + nk, ("k early", k, nk)
                    kslot.append(k)
                    kb, s = kpos(nk)
                    if not o.get('no_lds'): fill[k].append(self.kread(4*kb+s, (u+1) % NST))
                    nk += 1
                elif t == 'D':
                    kind, i = ('V', nd) if nd < 4 else ('K', nd - 4)
                    pos[('D', nd)] = k
                    if not o.get('no_dma'): fill[k].append(self.dma(kind, i))
                    nd += 1
                elif t == 'r':
                    pos['r'] = k
                    fill[k].append(f"v_readlane_b32 {sr(S_OFF)}, {vr(V_BT)}, {sr(S_IDX)}")
        assert (ne, nc, nv, nk, nd) == (124, 62, 32, 16, 8), (ne, nc, nv, nk, nd)
        w1, w1frags, b = o['w1'], o['w1frags'], o['bar_slot']
        issued = sum(1 for k in vslot if k < w1)
        assert w1 <= G + 16 and b - 1 <= G + 16 + w1frags
        put(w1, f"s_waitcnt lgkmcnt({issued - 2*w1frags})")
        put(b-1, "s_waitcnt vmcnt(8) lgkmcnt(0)" if not o.get('no_dma') else "s_waitcnt lgkmcnt(0)")
        assert max(vslot) < b - 1 and min(kslot) > b and pos[('D', 4)] > b + 1 and pos[('D', 3)] < b - 1
        if not o.get('no_barrier'): put(b, "s_barrier")
        put(NS-1, "s_waitcnt lgkmcnt(0)")
        put(pos[('D', 0)] - 2, self.m0('V', (u + NST - 1) % NST))
        put(b+1, self.m0('K', u))
        kb_ = self.base('K', S_OFF); vb_ = self.base('V', S_OFF)
        r = pos['r']
        put(r+1, kb_[0]); put(r+2, kb_[1])
        assert r + 2 < b - 1
        put(b+3, vb_[0]); put(b+4, vb_[1])
        put(b+5, f"s_add_u32 {sr(S_IDX)}, {sr(S_IDX)}, 1")
        put(b+6, f"s_cmp_eq_u32 {sr(S_IDX)}, {sr(S_END)}")
        if o.get('pstamp'):
            put(b+7, "s_memtime s[100:101]")
            fill[NS-4].append("s_waitcnt lgkmcnt(0)")
            fill[NS-4].append(f"v_cmp_eq_u32 vcc, {sr(S_IDX)}, {vr(V_LANE)}")
            fill[NS-1].append("v_mov_b32 v254, s100")
            fill[NS-1].append("v_cndmask_b32 v255, v255, v254, vcc")
        self.c(f"---- period, stage {u}")
        for k in range(NS):
            self.e(mf[k])
            assert len(salu[k]) <= 1 and not (salu[k] and 'D' in pat[k]), k
            for x in salu[k]: self.e(x)
            for x in fill[k]: self.e(x)

    def drain(self):
        e = self.e
        self.lab("L_drain")
        for el in range(12, 16): e(self.sm_exp(3, el))
        e("s_nop 0")
        for el in (13, 15): e(self.sm_cvt(3, el))
        e("s_nop 1")
        e(self.mfma_sum(3))
        for k in range(16):
            e(self.mfma_pv(3, *vpos(k)))

    def epilogue(self):
        e = self.e; o = self.o
        self.stamp('epi')
        if o.get('stamp'): e("s_memrealtime s[30:31]")
        T = V_KT
        WA = V_KA
        for qb in range(4):
            e(f"v_add_f32 {vr(V_L+4*qb)}, {vr(V_L+4*qb)}, {vr(V_L+4*qb+1)}")
        e(f"v_max3_f32 v1, {vr(V_L)}, {vr(V_L+4)}, {vr(V_L+8)}")
        e(f"v_add_f32 v11, {vr(V_L)}, {vr(V_L+4)}")
        e(f"v_max_f32 v1, v1, {vr(V_L+12)}")
        e(f"v_add_f32 v9, {vr(V_L+8)}, {vr(V_L+12)}")
        e(f"v_mov_b32 v10, {hex(f32bits(2.0**o['thr']))}")
        e("v_add_f32 v11, v11, v9")
        e("v_cmp_nle_f32 vcc, v1, v10")
        e("v_cmp_u_f32 s[60:61], v11, v11")
        e(f"s_lshl_b32 {sr(S_T)}, {sr(S_W)}, 13")
        e("s_or_b64 vcc, vcc, s[60:61]")
        e("s_cbranch_vccnz L_slow")
        self.lab("L_epi_ok")
        e(f"s_add_u32 {sr(S_T)}, {sr(S_T)}, {LDS_O}")
        for qb in range(4):
            e(f"v_rcp_f32 {vr(T+2*qb)}, {vr(V_L+4*qb)}")
        e(f"v_lshrrev_b32 v1, 5, {vr(V_LANE)}")
        e("v_xor_b32 v1, v1, v4")
        e("v_lshlrev_b32 v1, 4, v1")
        e("v_lshl_add_u32 v1, v4, 8, v1")
        e("v_and_b32 v11, 1, v3")
        e("v_lshl_add_u32 v1, v11, 3, v1")
        e(f"v_add_u32 {vr(WA)}, {sr(S_T)}, v1")
        for db in range(1, 8):
            e(f"v_xor_b32 {vr(WA+db)}, {32*db}, {vr(WA)}")
        for i in range(4):
            e(f"v_add_u32 {vr(V_QD+i)}, {sr(S_T)}, {vr(V_QD+i)}")
        e(f"v_lshlrev_b32 {vr(V_OOFF)}, 4, {vr(V_LANE)}")
        for qb in range(4):
            e(f"v_mov_b32 {vr(T+2*qb+1)}, {vr(T+2*qb)}")
        RB = 128
        def readback(qb):
            return [f"ds_read_b128 {vr(RB+16*qb+4*i,4)}, {vr(V_QD+i)} offset:{4096*(qb%2)+1024*i}" for i in range(4)]
        def store(qb, i):
            return f"buffer_store_dwordx4 {vr(RB+16*qb+4*i,4)}, {vr(V_OOFF)}, {sr(SRD_O,4)}, {sr(self.QO[qb])} offen" + (f" offset:{1024*i}" if i else "") + o.get('st_flags', '')
        n = 0
        for qb in range(4):
            for p in range(4):
                W = 16 + 16*(n % 4); n += 1
                for i in range(8):
                    e(f"v_accvgpr_read_b32 {vr(W+i)}, {ar(A_O+32*qb+8*p+i)}")
                if qb and p == 1:
                    e("s_waitcnt lgkmcnt(2)")
                if qb and p >= 1:
                    e(store(qb-1, p-1))
                    if p == 3: e(store(qb-1, 3))
                for i in range(4):
                    e(f"v_pk_mul_f32 {vr(W+2*i,2)}, {vr(W+2*i,2)}, {vr(T+2*qb,2)}")
                for i in range(4):
                    e(f"v_cvt_pk_bf16_f32 {vr(W+8+i)}, {vr(W+2*i)}, {vr(W+2*i+1)}")
                for h in range(2):
                    e(f"ds_write_b64 {vr(WA+2*p+h)}, {vr(W+8+2*h,2)} offset:{4096*(qb%2)}")
            for x in readback(qb): e(x)
        for i in range(4):
            e(f"s_waitcnt lgkmcnt({3-i})")
            e(store(3, i))
        if o.get('stamp'):
            self.stamp('stored')
            e("s_waitcnt vmcnt(0)")
            e("s_memtime s[62:63]")
            e("s_memrealtime s[64:65]")
            e("s_getreg_b32 s66, hwreg(HW_REG_XCC_ID)")
            e("s_getreg_b32 s67, hwreg(HW_REG_HW_ID)")
            e("s_waitcnt lgkmcnt(0)")
            e("v_mov_b32 v16, 0")
            n = self.nst
            for k in range(n):
                e(f"v_writelane_b32 v16, {sr(STAMP_REG[k])}, {k}")
            for k, r in enumerate((62, 64, 66, 67, 94, 24, 30)):
                e(f"v_writelane_b32 v16, s{r}, {n+k}")
            e(f"s_lshl_b32 {sr(S_T)}, s2, 2")
            e(f"s_add_u32 {sr(S_T)}, {sr(S_T)}, {sr(S_W)}")
            e(f"s_lshl_b32 {sr(S_T)}, {sr(S_T)}, 8")
            e(f"v_lshlrev_b32 v17, 2, {vr(V_LANE)}")
            e(f"buffer_store_dword {'v255' if o.get('pstamp') else 'v16'}, v17, {sr(SRD_D,4)}, {sr(S_T)} offen")
        self.lab("L_end")
        e("s_endpgm")
        self.L += getattr(self, 'var1', [])
        self.slow()
        for sfx in self.sfxs:
            for qb in range(4):
                self.lab(f"L_zeroq{qb}{sfx}")
                for i in range(16):
                    e(f"v_mov_b32 {vr(V_Q+16*qb+i)}, 0")
                e("s_nop 1")
                e(f"s_branch L_zeroq_ret{qb}{sfx}")
        self.lab("L_code_end")

    def slow(self):
        e = self.e
        KA2 = V_S + 8; VA2 = V_S + 16 + 8
        ST, SN, SP, PA, PB = 76, 77, 78, 79, 80
        e_nop = lambda: e("s_nop 7")
        self.lab("L_slow")
        e("s_waitcnt vmcnt(0) lgkmcnt(0)")
        for s in range(4):
            e(f"v_add_u32 {vr(KA2+s)}, {sr(S_DMAB)}, {vr(V_KA+s)}")
        for db in range(8):
            e(f"v_add_u32 {vr(VA2+db)}, {sr(S_DMAB)}, {vr(V_VA+db)}")
        for i in range(32):
            e(f"v_mov_b32 {vr(V_P+i)}, 0")
        for qb in range(4):
            e(f"v_mov_b32 {vr(V_NEGM+4*qb)}, {vr(V_NINF)}")
        e(f"s_add_u32 {sr(SN)}, {sr(S_CL)}, 31")
        e(f"s_lshr_b32 {sr(SN)}, {sr(SN)}, 5")
        e(f"s_mov_b32 {sr(SP)}, 0")
        Z = vr(V_P, 4)
        for i in range(8):
            e(f"v_mfma_f32_32x32x16_bf16 {ar(16*i,16)}, {Z}, {Z}, 0")
        e(f"v_mfma_f32_32x32x16_bf16 {vr(V_L,16)}, {Z}, {Z}, 0")
        self.lab("L_slow_pass")
        e(f"s_mov_b32 {sr(ST)}, 0")
        self.lab("L_slow_tile")
        e(f"s_lshl_b32 {sr(S_T2)}, {sr(ST)}, 3")
        e(f"s_load_dwordx2 s[82:83], {sr(S_PTR+6,2)}, {sr(S_T2)}")
        e(f"s_lshl_b32 {sr(S_T2)}, {sr(ST)}, 5")
        e(f"s_sub_u32 {sr(S_T2)}, {sr(S_CL)}, {sr(S_T2)}")
        e(f"v_lshlrev_b32 v10, 2, v3")
        e(f"v_sub_u32 v10, {sr(S_T2)}, v10")
        e("s_waitcnt lgkmcnt(0)")
        e(f"s_cmp_gt_u32 {sr(S_T2)}, 16")
        e("s_cselect_b32 s83, s83, 0")
        for r, d in ((82, PA), (83, PB)):
            e(f"s_min_u32 s{r}, s{r}, 0x83")
            e(f"s_lshl_b32 s{r}, s{r}, 16")
            e(f"s_add_u32 {sr(d)}, s{r}, {sr(S_HEAD)}")
        for kind in 'KV':
            for st, off in ((0, PA), (1, PB)):
                for x in self.base(kind, off): e(x)
                e(self.m0(kind, st)); e("s_nop 0")
                for i in range(4): e(self.dma(kind, i))
        for j in range(8):
            e(f"v_cmp_lt_i32 {sr(S_MASK+2*j,2)}, {16*(j//4)+j%4}, v10")
        e("s_waitcnt vmcnt(0)")
        for db in range(8):
            for u in range(2):
                e(f"ds_read_b64_tr_b16 {ar(A_V+8*db+2*u,2)}, {vr(VA2+db)} offset:{16384*u}")
            if db % 4 == 3: e("s_waitcnt lgkmcnt(0)")
        for kb in range(2):
            for s in range(4):
                e(f"ds_read_b128 {vr(V_KT+4*s,4)}, {vr(KA2+s)} offset:{16384*kb}")
            e("s_waitcnt lgkmcnt(0)")
            for qb in range(4):
                for s in range(4):
                    e(self.mfma_qk(qb, kb, s, first=True))
        e_nop()
        e(f"s_cmp_eq_u32 {sr(S_ZERO)}, 0")
        e("s_cbranch_scc1 L_slow_nz")
        for qb in range(4):
            for j in range(8):
                e(f"v_mov_b32 {vr(V_S+16*qb+j)}, 0")
        self.lab("L_slow_nz")
        for qb in range(4):
            for j in range(8):
                e(f"v_cndmask_b32 {vr(V_S+16*qb+j)}, {vr(V_NINF)}, {vr(V_S+16*qb+j)}, {sr(S_MASK+2*j,2)}")
        e(f"s_cmp_eq_u32 {sr(SP)}, 0")
        e("s_cbranch_scc0 L_slow_p1")
        for qb in range(4):
            for j in range(0, 8, 2):
                e(f"v_max3_f32 {vr(V_NEGM+4*qb)}, {vr(V_NEGM+4*qb)}, {vr(V_S+16*qb+j)}, {vr(V_S+16*qb+j+1)}")
        e("s_branch L_slow_next")
        self.lab("L_slow_p1")
        for qb in range(4):
            for j in range(8):
                e(f"v_sub_f32 {vr(V_S+16*qb+j)}, {vr(V_S+16*qb+j)}, {vr(V_NEGM+4*qb)}")
            for j in range(8): e(self.sm_exp(qb, j))
            e("s_nop 0")
            for j in range(1, 8, 2): e(self.sm_cvt(qb, j))
        e("s_nop 1")
        for qb in range(4):
            e(self.mfma_sum(qb))
            for db in range(8): e(self.mfma_pv(qb, db, 0))
        self.lab("L_slow_next")
        e(f"s_add_u32 {sr(ST)}, {sr(ST)}, 1")
        e(f"s_cmp_lt_u32 {sr(ST)}, {sr(SN)}")
        e("s_cbranch_scc1 L_slow_tile")
        e(f"s_cmp_eq_u32 {sr(SP)}, 0")
        e("s_cbranch_scc0 L_slow_done")
        for sw in ("v_permlane32_swap_b32", "v_permlane16_swap_b32"):
            for qb in range(4): e(f"v_mov_b32 {vr(V_NEGM+4*qb+1)}, {vr(V_NEGM+4*qb)}")
            e("s_nop 1")
            for qb in range(4): e(f"{sw} {vr(V_NEGM+4*qb)}, {vr(V_NEGM+4*qb+1)}")
            for qb in range(4): e(f"v_max_f32 {vr(V_NEGM+4*qb)}, {vr(V_NEGM+4*qb)}, {vr(V_NEGM+4*qb+1)}")
        e(f"s_mov_b32 {sr(SP)}, 1")
        e("s_branch L_slow_pass")
        self.lab("L_slow_done")
        e_nop(); e_nop()
        for qb in range(4):
            e(f"v_add_f32 {vr(V_L+4*qb)}, {vr(V_L+4*qb)}, {vr(V_L+4*qb+1)}")
        e("s_branch L_epi_ok")

    def build(self):
        self.prologue()
        if self.o.get('align'):
            self.L.append(f".p2align {self.o['align']}")
        self.lab("L_loop")
        for j in range(NST):
            self.period(j)
            if j < NST - 1:
                self.e("s_cbranch_scc1 L_drain")
            else:
                self.e("s_cbranch_scc0 L_loop")
        self.drain()
        self.epilogue()
        body = "\n".join(self.L)
        return (HEADER + f"; @launch grid=(256,1,1) block=(256,1,1) lds={LDS_O+32768}\n"
                ".amdgcn_target \"amdgcn-amd-amdhsa--gfx950\"\n.text\n"
                f".globl {NAME}_kernel\n.p2align 8\n.type {NAME}_kernel,@function\n{NAME}_kernel:\n"
                + body + "\n"
                ".section .rodata,\"a\"\n.p2align 6\n"
                f".amdhsa_kernel {NAME}_kernel\n"
                "  .amdhsa_next_free_vgpr 512\n  .amdhsa_next_free_sgpr 102\n  .amdhsa_accum_offset 256\n"
                "  .amdhsa_group_segment_fixed_size 0\n  .amdhsa_kernarg_size 64\n  .amdhsa_user_sgpr_count 2\n"
                "  .amdhsa_user_sgpr_kernarg_segment_ptr 1\n  .amdhsa_system_sgpr_workgroup_id_x 1\n"
                ".end_amdhsa_kernel\n")


DEFAULT = dict(thr=30, kindbit=7, nq_early2=0, ld_a2='k0 v0 k1 v1 q0', seq2='L:q1,q2 s0:q3 A:k0,v0,k1,v1 s1 Q01:V0 P01:V1,K1,k2,v2 s2 Q2 P2:k3 s3 Q3',
    stamps=['start','karg','bt','issued','prebar','loop','epi','stored'], w1=49, w1frags=12, bar_slot=58, mixinit=True, nq_early=2, ld_a='k0 v0', seq='s0:q2 s1:q3 A:k0,v0 Q01:V0 P01:V1,k1,v1 s2 Q2 P2:k2 B:k1,v1 R:K1 s3:v2,k3 Q3', pf=True, st_flags=' sc0 sc1 nt')

def parse_opts(args):
    o = dict(DEFAULT)
    for a in args:
        k, _, v = a.partition("=")
        if v == "": o[k] = True
        else:
            try: o[k] = eval(v)
            except Exception: o[k] = v
    return o

if __name__ == "__main__":
    o = parse_opts(sys.argv[2:])
    open(sys.argv[1], "w").write(Gen(o).build())
```

```python
import sys, struct, math

NAME = "standalone__paged_block_table_kv_pagedattention__prompt"

HEADER = """; Kernarg layout for this problem (64 bytes, ptrs only, base s[0:1]):
"""

def f32bits(x):
    return struct.unpack("<I", struct.pack("<f", x))[0]

S_W = 3; S_CL = 4; S_N = 5; S_REM = 6; S_T = 7; S_IDX = 8; S_END = 9
S_OFF = 10; S_T3 = 11; S_DMAB = 12; S_DMAV = 13; S_ROW = 14; S_HEAD = 15
S_PTR = 16
P_K = 18; P_V = 20
S_C = 32
S_T2 = 34; S_ZERO = 35
SRD_Q = 36; S_KB = 40; S_VB = 42; SRD_X = 44; SRD_O = 48; SRD_BT = 52; SRD_D = 56
S_MASK = 60
STAMP_REG = [92, 96, 98, 100, 16, 36, 26, 28, 52, 54]
V_LANE = 2
V_S = 16; V_P = 48; V_NEGM = 64; V_O = 128
V_KA = 80; V_VA = 84; V_DK = 92; V_DVV = 96; V_BT = 100
V_IDX = 101; V_NINF = 102; V_G4 = 103; V_KT = 104
V_MS = [12, 14, 12, 14]
V_QD = 5
V_QA = 120
QSLICE = [16384, 65536 + 16384, 32768, 65536 + 32768]
LDS_O = 131072
A_K = 0; A_V = 64; A_Q = 128; A_L = 192; A_ONES = 208; A_Z = 212
def SB(qb): return V_S + 16*(qb % 2)
def PB(qb): return V_P + 8*(qb % 2)

NST = 3
LDS_V = 65536
KV_BYTES = 132 * 65536
Q_BYTES = 16777216

def vr(b, n=1): return f"v{b}" if n == 1 else f"v[{b}:{b+n-1}]"
def ar(b, n=1): return f"a{b}" if n == 1 else f"a[{b}:{b+n-1}]"
def sr(b, n=1): return f"s{b}" if n == 1 else f"s[{b}:{b+n-1}]"
MF = "v_mfma_f32_16x16x32_bf16"

PATTERN = (
    "e e c D e e c D e e c D e e c D e e "
    "vc vv e vv e vc vv e vv e vc vv e vv e vc vv e vv e vc vv e vv e vc vv e vv e vc v "
    "e e cr e e c e e - c D e e c e e c D e e c e e c "
    "D e e c - e e c D e - e c e - e c e - e c e - e c e "
    "k e kc e kk e kc kk e kk e kc e kk e kc e kk e kc e - e c e e c e - e c -"
).split()
NS = 132
assert len(PATTERN) == NS, len(PATTERN)
def kpos(j):
    kb, s = j // 4, j % 4
    return kb, (3 - s if kb % 2 else s)
def vpos(j):
    db, ks = j // 2, j % 2
    return db, (1 - ks if db % 2 else ks)


class Gen:
    def __init__(self, opt):
        self.o = opt
        self.L = []
        self.nst = 0
        self.vm = []
        self.ool = []
    def e(self, s): self.L.append("    " + s)
    def lab(self, s): self.L.append(s + ":")
    def c(self, s): self.L.append("    ; " + s)
    def vmem(self, s, tag):
        self.e(s); self.vm.append(tag)
    def vmwait(self, *tags):
        last = max(i for i, t in enumerate(self.vm) if t in tags)
        self.e(f"s_waitcnt vmcnt({len(self.vm) - 1 - last})")

    def mfma_qk(self, qb, kb, s, first=False, head=None):
        d = vr(SB(qb) + 4*kb, 4)
        if head is None: head = s == 0
        c = d if not head else ("0" if first else vr(V_NEGM + 4*qb, 4))
        a = vr(V_KT + 4*s, 4) if first else ar(A_K + 4*(4*kb+s), 4)
        return f"{MF} {d}, {a}, {ar(A_Q+16*qb+4*s,4)}, {c}"
    def mfma_pv(self, qb, db, ks, first=False):
        d = vr(V_O + 32*qb + 4*db, 4)
        return f"{MF} {d}, {ar(A_V+4*(2*db+ks),4)}, {vr(PB(qb)+4*ks,4)}, {'0' if first else d}"
    def mfma_sum(self, qb):
        return f"v_smfmac_f32_16x16x64_bf16 {ar(A_L+4*qb,4)}, {ar(A_ONES,4)}, {vr(PB(qb),8)}, {vr(V_IDX)}"
    def kread(self, f, stage, temp=False):
        kb, s = f // 4, f % 4
        d = vr(V_KT + 4*s, 4) if temp else ar(A_K + 4*f, 4)
        return f"ds_read_b128 {d}, {vr(V_KA+s)} offset:{stage*16384+kb*4096}"
    def vread(self, i, stage):
        f, u = i // 2, i % 2
        db, ks = f // 2, f % 2
        return f"ds_read_b64_tr_b16 {ar(A_V+4*f+2*u,2)}, {vr(V_VA+db)} offset:{stage*16384+(32*ks+16*u)*256}"
    def dma(self, kind, i):
        v, b = (V_DK, S_KB) if kind == 'K' else (V_DVV, S_VB)
        return f"global_load_lds_dwordx4 {vr(v+i)}, {sr(b,2)}" + (f" offset:{1024*i}" if i else "") + self.o.get('ld_flags', '')
    def m0(self, kind, stage):
        return f"s_add_u32 m0, {sr(S_DMAB if kind == 'K' else S_DMAV)}, {stage*16384}"
    def base(self, kind, soff):
        b, p = (S_KB, P_K) if kind == 'K' else (S_VB, P_V)
        return [f"s_add_u32 {sr(b)}, {sr(p)}, {sr(soff)}", f"s_addc_u32 {sr(b+1)}, {sr(p+1)}, 0"]
    def sm_exp(self, qb, e):
        r = SB(qb) + e
        return f"v_exp_f32 {vr(r)}, {vr(r)}"
    def sm_cvt(self, qb, e):
        r = SB(qb) + e
        return f"v_cvt_pk_bf16_f32 {vr(PB(qb)+e//2)}, {vr(r-1)}, {vr(r)}"
    def stamp(self, name):
        if self.o.get('stamp') and name in self.o['stamps']:
            self.e(f"s_memtime {sr(STAMP_REG[self.nst],2)}")
            self.nst += 1
    def group(self, kind, stage, soff, tag):
        for x in self.base(kind, soff): self.e(x)
        self.e(self.m0(kind, stage))
        self.e("s_nop 0")
        for i in range(4): self.vmem(self.dma(kind, i), tag)
        self.stamp('i' + tag)

    def ool_begin(self, name, limit):
        self.e(f"s_cmp_gt_u32 {sr(S_REM)}, {limit}")
        self.e(f"s_cbranch_scc1 {name}_more")
        self.inline = self.L; self.L = self.ool
        self.lab(f"{name}_more")
    def ool_end(self, name):
        self.e(f"s_branch {name}")
        self.L = self.inline
        self.lab(name)

    def emit_load(self, item):
        for x, tag in item:
            if tag: self.vmem(x, tag)
            else: self.e(x)

    def scale_q(self, qb):
        out = []; e = out.append
        for s in range(4):
            TA = SB(qb) + 8*(s % 2)
            e(f"s_waitcnt lgkmcnt({3-s})")
            for i in range(4):
                q = SB(qb+1) + 4*s + i
                e(f"v_lshlrev_b32 {vr(TA+2*i)}, 16, {vr(q)}")
                e(f"v_and_b32 {vr(TA+2*i+1)}, 0xffff0000, {vr(q)}")
            for i in range(4):
                e(f"v_pk_mul_f32 {vr(TA+2*i,2)}, {vr(TA+2*i,2)}, {sr(S_C,2)}")
            for i in range(4):
                e(f"v_cvt_pk_bf16_f32 {vr(TA+2*i)}, {vr(TA+2*i)}, {vr(TA+2*i+1)}")
            for i in range(4):
                e(f"v_accvgpr_write_b32 {ar(A_Q+16*qb+4*s+i)}, {vr(TA+2*i)}")
        return out

    def first_qk(self, blocks, shadow=()):
        e = self.e; tag = ''.join(map(str, blocks))
        self.done_q += tag
        tag += self.sfx
        M = {qb: V_MS[qb] for qb in blocks}
        shadow = list(shadow)
        if 3 in blocks:
            for i in range(4):
                e(f"v_mov_b32 {vr(SB(3)+12+i)}, {vr(V_NINF)}")
        for kb in range(4):
            if kb == 1: self.ool_begin(f"L_fa{tag}", 16)
            if kb > 1:
                e(f"s_cmp_le_u32 {sr(S_REM)}, {16*kb}")
                e(f"s_cbranch_scc1 L_fa{tag}")
            if kb:
                for s in range(4): e(self.kread(4*kb+s, 3, temp=True))
            e("s_waitcnt lgkmcnt(0)")
            if kb == 0: e("s_nop 0")
            for qb in blocks:
                for s in range(4):
                    e(self.mfma_qk(qb, kb, s, first=True))
                    if kb == 0:
                        for _ in range(2):
                            if shadow: e(shadow.pop(0))
            if kb == 0 and shadow:
                e("s_waitcnt lgkmcnt(6)")
                n = len(shadow)
                while shadow: e(shadow.pop(0))
                if n < 7 and len(blocks) < 3: e(f"s_nop {7-n}")
            elif len(blocks) < 3:
                e("s_nop 7")
            for qb in blocks:
                S = SB(qb) + 4*kb
                for r in range(4):
                    e(f"v_cndmask_b32 {vr(S+r)}, {vr(V_NINF)}, {vr(S+r)}, {sr(S_MASK+2*(4*kb+r),2)}")
                if kb == 0:
                    e(f"v_max3_f32 {vr(M[qb])}, {vr(S)}, {vr(S+1)}, {vr(S+2)}")
                    e(f"v_max_f32 {vr(M[qb])}, {vr(M[qb])}, {vr(S+3)}")
                else:
                    e(f"v_max3_f32 {vr(M[qb])}, {vr(M[qb])}, {vr(S)}, {vr(S+1)}")
                    e(f"v_max3_f32 {vr(M[qb])}, {vr(M[qb])}, {vr(S+2)}, {vr(S+3)}")
        self.ool_end(f"L_fa{tag}")
        if 3 not in blocks:
            for s in range(4): e(self.kread(s, 3, temp=True))
        for sw in ("v_permlane32_swap_b32", "v_permlane16_swap_b32"):
            for qb in blocks: e(f"v_mov_b32 {vr(M[qb]+1)}, {vr(M[qb])}")
            e("s_nop 1" if len(blocks) < 2 else "s_nop 0")
            for qb in blocks: e(f"{sw} {vr(M[qb])}, {vr(M[qb]+1)}")
            for qb in blocks: e(f"v_max_f32 {vr(M[qb])}, {vr(M[qb])}, {vr(M[qb]+1)}")
        for qb in blocks:
            for r in range(4):
                e(f"v_sub_f32 {vr(V_NEGM+4*qb+r)}, 0, {vr(M[qb])}")
        for kb in range(4):
            if kb == 1: self.ool_begin(f"L_fb{tag}", 16)
            if kb > 1:
                e(f"s_cmp_le_u32 {sr(S_REM)}, {16*kb}")
                e(f"s_cbranch_scc1 L_fb{tag}")
            for qb in blocks:
                S = SB(qb) + 4*kb
                for r in range(4):
                    e(f"v_sub_f32 {vr(S+r)}, {vr(S+r)}, {vr(M[qb])}")
                if kb == 3 and qb == 3:
                    continue
                for r in range(4):
                    e(self.sm_exp(qb, 4*kb+r))
            if len(blocks) < 2: e("s_nop 0")
            for qb in blocks:
                if kb == 3 and qb == 3:
                    continue
                for r in (1, 3):
                    e(self.sm_cvt(qb, 4*kb+r))
        self.ool_end(f"L_fb{tag}")

    def first_pv(self, blocks, shadow):
        e = self.e; tag = ''.join(map(str, blocks)) + self.sfx
        shadow = list(shadow)
        for ks in range(2):
            if ks:
                self.ool_begin(f"L_fc{tag}", 32)
                e("s_waitcnt lgkmcnt(0)")
            for qb in blocks:
                for x in ([self.mfma_sum(qb)] if ks == 0 else []) + [self.mfma_pv(qb, db, ks, first=(ks == 0)) for db in range(8)]:
                    e(x)
                    if ks == 0 and shadow: self.emit_load(shadow.pop(0))
            if ks == 0:
                while shadow: self.emit_load(shadow.pop(0))
        self.ool_end(f"L_fc{tag}")

    def prologue(self):
        e = self.e; o = self.o
        e("s_cmp_ge_u32 s2, 256")
        e("s_cbranch_scc1 L_end")
        e(f"s_load_dwordx16 {sr(S_PTR,16)}, s[0:1], 0")
        self.stamp('start')
        if o.get('stamp'):
            e("s_memrealtime s[94:95]")
        if o.get('pf'):
            e("s_getpc_b64 s[66:67]")
            self.lab("L_pc")
            e("v_lshlrev_b32 v14, 7, v0")
            e("v_min_u32 v14, L_code_end-L_pc-4, v14")
            self.vmem("global_load_dword v15, v14, s[66:67]", 'pf')
        e("v_lshrrev_b32 v1, 6, v0")
        e(f"v_and_b32 {vr(V_LANE)}, 63, v0")
        e(f"v_readfirstlane_b32 {sr(S_W)}, v1")
        e(f"s_and_b32 {sr(S_T)}, s2, 7")
        e(f"s_lshl_b32 {sr(S_T)}, {sr(S_T)}, 1")
        e(f"s_bfe_u32 {sr(S_HEAD)}, s2, 0x10003")
        e(f"s_add_u32 {sr(S_HEAD)}, {sr(S_HEAD)}, {sr(S_T)}")
        e(f"s_lshr_b32 {sr(S_T)}, s2, 4")
        e(f"s_lshl4_add_u32 {sr(S_ROW)}, {sr(S_HEAD)}, {sr(S_T)}")
        e(f"s_lshl2_add_u32 {sr(S_ROW)}, {sr(S_ROW)}, {sr(S_W)}")
        e(f"s_lshl_b32 {sr(S_ROW)}, {sr(S_ROW)}, 14")
        e(f"s_lshl_b32 {sr(S_DMAB)}, {sr(S_W)}, 12")
        e(f"v_lshrrev_b32 v3, 4, {vr(V_LANE)}")
        e(f"v_and_b32 v4, 15, {vr(V_LANE)}")
        e("v_xor_b32 v11, v4, v3")
        e("v_lshlrev_b32 v11, 4, v11")
        e(f"v_lshl_add_u32 {vr(V_QD)}, v3, 8, v11")
        e(f"v_and_b32 v9, 31, {vr(V_LANE)}")
        e(f"s_lshl_b32 {sr(S_T2)}, {sr(S_W)}, 2")
        e(f"v_lshl_add_u32 v9, v9, 4, {sr(S_T2)}")
        e(f"s_mov_b32 {sr(SRD_BT+2)}, 512")
        e(f"s_mov_b32 {sr(SRD_BT+3)}, 0x20000")
        e(f"s_mov_b32 {sr(SRD_Q+2)}, {Q_BYTES}")
        e(f"s_mov_b32 {sr(SRD_Q+3)}, 0x20000")
        for i in range(1, 4):
            e(f"v_xor_b32 {vr(V_QD+i)}, {64*i}, {vr(V_QD)}")
        e(f"s_add_u32 m0, {sr(S_DMAB)}, {QSLICE[0]}")
        e("s_waitcnt lgkmcnt(0)")
        self.stamp('karg')
        def srdbase(b, p):
            e(f"s_mov_b32 {sr(b)}, {sr(p)}")
            e(f"s_and_b32 {sr(b+1)}, {sr(p+1)}, 0xffff")
        srdbase(SRD_BT, S_PTR+6)
        self.vmem(f"buffer_load_dword {vr(V_BT)}, v9, {sr(SRD_BT,4)}, 0 offen", 'bt')
        e(f"s_load_dword {sr(S_CL)}, {sr(S_PTR+8,2)}, 0")
        srdbase(SRD_Q, S_PTR+0)
        if o.get('tlb'):
            e(f"v_and_b32 v14, 7, {vr(V_LANE)}")
            e(f"v_lshlrev_b32 v14, 20, v14")
            self.vmem(f"global_load_dword v15, v14, {sr(P_K,2)}", 'tlb')
            self.vmem(f"global_load_dword v15, v14, {sr(P_V,2)}", 'tlb')
        QO = [S_ROW, 45, 46, 47]
        self.QO = QO
        def qload(qb, first=False):
            g = [[(f"buffer_load_dwordx4 {vr(V_QD+i)}, {sr(SRD_Q,4)}, {sr(QO[qb])} offen" + (f" offset:{1024*i}" if i else "") + o.get('q_flags', '') + " lds", f'q{qb}')] for i in range(4)]
            if not first:
                g[0] = [(f"s_add_u32 m0, {sr(S_DMAB)}, {QSLICE[qb]}", None), (f"s_add_u32 {sr(QO[qb])}, {sr(S_ROW)}, {4096*qb}", None)] + g[0]
            return g
        def grp(kind, stage, soff, tag):
            g = [[(self.dma(kind, i), tag)] for i in range(4)]
            g[0] = [(x, None) for x in self.base(kind, soff)] + [(self.m0(kind, stage), None), ("s_nop 0", None)] + g[0]
            return g
        self.grp = grp
        def mix(work, loads):
            n = len(loads); k = 0
            for i, x in enumerate(work):
                while k < n and k * len(work) <= i * n:
                    self.emit_load(loads[k]); k += 1
                e(x)
            while k < n:
                self.emit_load(loads[k]); k += 1
        init = []
        a = init.append
        a(f"s_lshl_b32 {sr(S_HEAD)}, {sr(S_HEAD)}, 8")
        a(f"s_add_u32 {sr(S_DMAV)}, {sr(S_DMAB)}, {LDS_V}")
        a(f"s_mov_b32 {sr(SRD_O+2)}, {Q_BYTES}")
        a(f"s_mov_b32 {sr(SRD_O+3)}, 0x20000")
        a(f"v_lshl_add_u32 {vr(V_DK)}, v3, 12, v11")
        a(f"v_lshl_add_u32 {vr(V_KA)}, v4, 8, v11")
        a("v_lshlrev_b32 v1, 1, v3")
        a("v_xor_b32 v1, v4, v1")
        a("v_lshlrev_b32 v1, 4, v1")
        a(f"v_lshl_add_u32 {vr(V_DVV)}, v3, 12, v1")
        for i in range(1, 4):
            a(f"v_xor_b32 v1, {64*i}, {vr(V_DK)}")
            a(f"v_add_u32 {vr(V_DK+i)}, {15360*i}, v1")
            if i % 2:
                a(f"v_xor_b32 v1, 0x80, {vr(V_DVV)}")
                a(f"v_add_u32 {vr(V_DVV+i)}, {15360*i}, v1")
            else:
                a(f"v_add_u32 {vr(V_DVV+i)}, {15360*i}, {vr(V_DVV)}")
        a(f"v_lshlrev_b32 {vr(V_G4)}, 2, v3")
        for s in range(1, 4):
            a(f"v_xor_b32 {vr(V_KA+s)}, {64*s}, {vr(V_KA)}")
        for s in range(4):
            a(f"v_add_u32 {vr(V_QA+s)}, {sr(S_DMAB)}, {vr(V_KA+s)}")
            a(f"v_add_u32 {vr(V_QA+4+s)}, {sr(S_DMAV)}, {vr(V_KA+s)}")
        a(f"v_lshrrev_b32 v1, 2, {vr(V_LANE)}")
        a("v_and_b32 v11, 7, v1")
        a("v_lshlrev_b32 v11, 5, v11")
        a("v_lshl_add_u32 v11, v1, 8, v11")
        a("v_and_b32 v1, 3, v4")
        a("v_lshl_add_u32 v11, v1, 3, v11")
        a(f"v_add_u32 {vr(V_VA)}, {LDS_V}, v11")
        for db in range(1, 8):
            a(f"v_xor_b32 {vr(V_VA+db)}, {32*db}, {vr(V_VA)}")
        a(f"v_mov_b32 {vr(V_NINF)}, 0xff800000")
        c = (1.0/math.sqrt(128.0)) * math.log2(math.e)
        a(f"s_mov_b32 {sr(S_C)}, {hex(f32bits(c))}")
        a(f"s_mov_b32 {sr(S_C+1)}, {hex(f32bits(c))}")
        a("v_mov_b32 v1, 0x3f803f80")
        for i in range(4):
            a(f"v_accvgpr_write_b32 {ar(A_Z+i)}, 0")
            a(f"v_accvgpr_write_b32 {ar(A_ONES+i)}, v1")
        a(f"v_and_b32 v1, 1, {vr(V_LANE)}")
        a(f"v_mul_u32_u24 v1, 0xaaaa, v1")
        a(f"v_add_u32 v1, 0x4444, v1")
        a(f"v_lshl_or_b32 {vr(V_IDX)}, v1, 16, v1")
        variants = [dict(nq_early=o['nq_early'], ld_a=o['ld_a'], seq=o['seq'])]
        if o.get('seq2'):
            variants.append(dict(nq_early=o['nq_early2'], ld_a=o['ld_a2'], seq=o['seq2']))
            e(f"s_bitcmp{0 if o.get('kindinv') else 1}_b32 s2, {o['kindbit']}")
            e("s_cbranch_scc1 L_var1")
        vm0, nst0 = list(self.vm), self.nst
        self.sfxs = []
        def variant(V):
            early = []
            for qb in range(V['nq_early']): early += qload(qb, qb == 0)
            if o.get('mixinit'):
                mix(init, early)
            else:
                mix([], early); mix(init, [])
            srdbase(SRD_O, S_PTR+10)
            if o.get('tlbo'):
                e(f"v_mov_b32 v14, {sr(S_ROW)}")
                self.vmem(f"global_load_dword v15, v14, {sr(S_PTR+10,2)}", 'tlbo')
            if o.get('stamp'):
                srdbase(SRD_D, S_PTR+14)
                e(f"s_mov_b32 {sr(SRD_D+2)}, 268435456")
                e(f"s_mov_b32 {sr(SRD_D+3)}, 0x20000")
            Z = ar(A_Z, 4)
            e(f"v_mfma_f32_32x32x16_bf16 {ar(A_L,16)}, {Z}, {Z}, 0")
            e(f"v_mfma_f32_32x32x16_bf16 {vr(V_P,16)}, {Z}, {Z}, 0")
            for i in range(2):
                e(f"v_mfma_f32_32x32x16_bf16 {vr(V_O+96+16*i,16)}, {Z}, {Z}, 0")
            e("s_waitcnt lgkmcnt(0)")
            e(f"s_cmp_le_i32 {sr(S_CL)}, 0")
            e(f"s_cselect_b32 {sr(S_ZERO)}, 1, 0")
            e(f"s_cselect_b32 {sr(S_CL)}, 0x800, {sr(S_CL)}")
            e(f"s_min_u32 {sr(S_CL)}, {sr(S_CL)}, 0x800")
            e(f"s_add_u32 {sr(S_N)}, {sr(S_CL)}, 63")
            e(f"s_lshr_b32 {sr(S_N)}, {sr(S_N)}, 6")
            e(f"s_sub_u32 {sr(S_IDX)}, {sr(S_N)}, 1")
            e(f"s_lshl_b32 {sr(S_T2)}, {sr(S_IDX)}, 6")
            e(f"s_sub_u32 {sr(S_REM)}, {sr(S_CL)}, {sr(S_T2)}")
            e(f"s_add_u32 {sr(S_END)}, {sr(S_N)}, 2")
            e("v_lshlrev_b32 v9, 2, v9")
            e(f"v_cmp_gt_u32 vcc, {sr(S_CL)}, v9")
            e(f"v_sub_u32 v10, {sr(S_REM)}, {vr(V_G4)}")
            self.vmwait('bt')
            self.stamp('bt')
            e(f"v_cndmask_b32 {vr(V_BT)}, 0, {vr(V_BT)}, vcc")
            e(f"v_min_u32 {vr(V_BT)}, 0x83, {vr(V_BT)}")
            e(f"v_lshlrev_b32 {vr(V_BT)}, 16, {vr(V_BT)}")
            e(f"v_add_u32 {vr(V_BT)}, {sr(S_HEAD)}, {vr(V_BT)}")
            e("s_nop 0")
            T0, T1, T2, T3 = S_T, S_T3, 44, S_OFF
            e(f"v_readlane_b32 {sr(T0)}, {vr(V_BT)}, {sr(S_IDX)}")
            e(f"v_readlane_b32 {sr(T1)}, {vr(V_BT)}, 0")
            e(f"v_readlane_b32 {sr(T2)}, {vr(V_BT)}, 1")
            e(f"v_readlane_b32 {sr(T3)}, {vr(V_BT)}, 2")
            e(f"s_mov_b32 {sr(S_IDX)}, 3")
            masks = [f"v_cmp_lt_i32 {sr(S_MASK+2*(4*kb+r),2)}, {16*kb+r}, v10" for kb in range(4) for r in range(4)]
            G = dict(k0=grp('K', 3, T0, 'k0'), v0=grp('V', 3, T0, 'v0'), k1=grp('K', 0, T1, 'k1'), v1=grp('V', 0, T1, 'v1'),
                     k2=grp('K', 1, T2, 'k2'), v2=grp('V', 1, T2, 'v2'), k3=grp('K', 2, T3, 'k3'))
            for qb in range(4): G[f'q{qb}'] = qload(qb)
            def loads(names):
                out = []
                for n in names.split(): out += G[n]
                return out
            def scale(qb, names=""):
                self.vmwait(f'q{qb}')
                self.stamp(f'q{qb}')
                for s in range(4):
                    e(f"ds_read_b128 {vr(SB(qb+1)+4*s,4)}, {vr(V_QA+4*(qb%2)+s)} offset:{16384*(1+qb//2)}")
                mix(self.scale_q(qb), loads(names))
                e(f"s_cmp_eq_u32 {sr(S_ZERO)}, 1")
                e(f"s_cbranch_scc1 L_zeroq{qb}{self.sfx}")
                self.lab(f"L_zeroq_ret{qb}{self.sfx}")
            mix(masks, loads(V['ld_a']))
            self.stamp('lda')
            v0 = [self.vread(i, 3) for i in range(32) if (i // 2) % 2 == 0]
            v1 = [self.vread(i, 3) for i in range(32) if (i // 2) % 2 == 1]
            k1 = [self.kread(f, 0) for f in range(16)]
            RD = dict(V0=v0, V1=v1, K1=k1)
            for step in V['seq'].split():
                name, _, arg = step.partition(':')
                args = [x for x in arg.split(',') if x]
                if name[0] == 's':
                    scale(int(name[1]), ' '.join(args))
                elif name in 'AB':
                    self.vmwait(*args)
                    e("s_barrier")
                    self.stamp('bar' + name)
                    if name == 'A':
                        for s in range(4): e(self.kread(s, 3, temp=True))
                elif name[0] == 'Q':
                    self.first_qk([int(x) for x in name[1:]], sum((RD[x] for x in args), []))
                    self.stamp(name)
                elif name[0] == 'P':
                    rd = sum((RD[x] for x in args if x in RD), [])
                    dm = loads(' '.join(x for x in args if x not in RD))
                    sh = []
                    nm = 9 * (len(name) - 1)
                    e("s_waitcnt lgkmcnt(4)" if '3' not in self.done_q else "s_waitcnt lgkmcnt(0)")
                    e("s_nop 0")
                    while rd or dm:
                        if rd: sh.append([(rd.pop(0), None), (rd.pop(0), None)])
                        elif len(sh) + 2 * len(dm) <= nm: sh.append([])
                        if dm and (len(sh) % 5 in (1, 3) or not rd): sh.append(dm.pop(0))
                    self.first_pv([int(x) for x in name[1:]], sh)
                    self.stamp(name)
                elif name == 'L':
                    for x in loads(' '.join(args)): self.emit_load(x)
                elif name == 'R':
                    for x in args:
                        for i, r in enumerate(RD[x]):
                            if i == 8: e("s_waitcnt lgkmcnt(2)")
                            e(r)
            for x in self.base('V', T3): e(x)
        for vi in reversed(range(len(variants))):
            self.vm, self.nst, self.done_q, self.sfx = list(vm0), nst0, '', f"_{vi}"
            self.sfxs.append(self.sfx)
            if vi == 1:
                save = self.L; self.L = []
                self.lab("L_var1")
                variant(variants[1])
                e("s_branch L_join")
                self.var1 = self.L; self.L = save
            else:
                variant(variants[0])
        self.lab("L_join")
        self.stamp('loop')
        if o.get('stamp'): e("s_memrealtime s[24:25]")
        e("s_waitcnt lgkmcnt(0)")
        e(f"s_cmp_eq_u32 {sr(S_N)}, 1")
        e("s_cbranch_scc1 L_drain")

    def period(self, u):
        o = self.o
        G = NS // 4
        pat = o.get('pattern', PATTERN)
        mf = [None]*NS
        qk_end = {}
        for qb in range(4):
            b = G*qb
            for k in range(16):
                kb, s = kpos(k)
                mf[b + k] = self.mfma_qk(qb, kb, s, head=(k % 4 == 0))
                qk_end[(qb, kb)] = b + k
            pq = (qb + 3) % 4
            mf[b+16] = self.mfma_sum(pq)
            for k in range(16):
                mf[b + 17 + k] = self.mfma_pv(pq, *vpos(k))
        salu = [[] for _ in range(NS)]
        def put(k, x): salu[k].append(x)
        fill = [[] for _ in range(NS)]
        ne = 60; nc = 30; nv = 0; nk = 0; nd = 0
        vslot = []; kslot = []; pos = {}
        for k, tok in enumerate(pat):
            for t in tok:
                if t == 'e':
                    qb, el = (ne // 16) % 4, ne % 16
                    if ne >= 64:
                        assert k - qk_end[(qb, el // 4)] >= 4, ("exp early", k, qb, el)
                    pos[('e', ne)] = k
                    if not o.get('no_valu'): fill[k].append(self.sm_exp(qb, el))
                    ne += 1
                elif t == 'c':
                    el2 = 2*nc + 1
                    qb, el = (el2 // 16) % 4, el2 % 16
                    assert pos[('e', el2)] < k, ("cvt early", k)
                    dead = (G*((qb+1) % 4) + 16) + (NS if (qb == 3 and el2 >= 64) else 0)
                    assert k < dead - 1, ("cvt late", k, qb, el)
                    if not o.get('no_valu'): fill[k].append(self.sm_cvt(qb, el))
                    nc += 1
                elif t == 'v':
                    assert k > 17 + nv // 2, ("v early", k, nv)
                    vslot.append(k)
                    db, ks = vpos(nv // 2)
                    if not o.get('no_lds'): fill[k].append(self.vread(2*(2*db+ks) + nv % 2, u))
                    nv += 1
                elif t == 'k':
                    assert k > 3*G + nk, ("k early", k, nk)
                    kslot.append(k)
                    kb, s = kpos(nk)
                    if not o.get('no_lds'): fill[k].append(self.kread(4*kb+s, (u+1) % NST))
                    nk += 1
                elif t == 'D':
                    kind, i = ('V', nd) if nd < 4 else ('K', nd - 4)
                    pos[('D', nd)] = k
                    if not o.get('no_dma'): fill[k].append(self.dma(kind, i))
                    nd += 1
                elif t == 'r':
                    pos['r'] = k
                    fill[k].append(f"v_readlane_b32 {sr(S_OFF)}, {vr(V_BT)}, {sr(S_IDX)}")
        assert (ne, nc, nv, nk, nd) == (124, 62, 32, 16, 8), (ne, nc, nv, nk, nd)
        w1, w1frags, b = o['w1'], o['w1frags'], o['bar_slot']
        issued = sum(1 for k in vslot if k < w1)
        assert w1 <= G + 16 and b - 1 <= G + 16 + w1frags
        put(w1, f"s_waitcnt lgkmcnt({issued - 2*w1frags})")
        put(b-1, "s_waitcnt vmcnt(8) lgkmcnt(0)" if not o.get('no_dma') else "s_waitcnt lgkmcnt(0)")
        assert max(vslot) < b - 1 and min(kslot) > b and pos[('D', 4)] > b + 1 and pos[('D', 3)] < b - 1
        if not o.get('no_barrier'): put(b, "s_barrier")
        put(NS-1, "s_waitcnt lgkmcnt(0)")
        put(pos[('D', 0)] - 2, self.m0('V', (u + NST - 1) % NST))
        put(b+1, self.m0('K', u))
        kb_ = self.base('K', S_OFF); vb_ = self.base('V', S_OFF)
        r = pos['r']
        put(r+1, kb_[0]); put(r+2, kb_[1])
        assert r + 2 < b - 1
        put(b+3, vb_[0]); put(b+4, vb_[1])
        put(b+5, f"s_add_u32 {sr(S_IDX)}, {sr(S_IDX)}, 1")
        put(b+6, f"s_cmp_eq_u32 {sr(S_IDX)}, {sr(S_END)}")
        if o.get('pstamp'):
            put(b+7, "s_memtime s[100:101]")
            fill[NS-4].append("s_waitcnt lgkmcnt(0)")
            fill[NS-4].append(f"v_cmp_eq_u32 vcc, {sr(S_IDX)}, {vr(V_LANE)}")
            fill[NS-1].append("v_mov_b32 v254, s100")
            fill[NS-1].append("v_cndmask_b32 v255, v255, v254, vcc")
        self.c(f"---- period, stage {u}")
        for k in range(NS):
            self.e(mf[k])
            assert len(salu[k]) <= 1 and not (salu[k] and 'D' in pat[k]), k
            for x in salu[k]: self.e(x)
            for x in fill[k]: self.e(x)

    def finish_block(self, qb, pk):
        R = V_MS[0] + 0
        out = []
        O = V_O + 32*qb
        r = vr(V_KT + 2*qb, 2)
        for db in range(8):
            b = O + 4*db
            if pk:
                out += [f"v_pk_mul_f32 {vr(b,2)}, {vr(b,2)}, {r}", f"v_pk_mul_f32 {vr(b+2,2)}, {vr(b+2,2)}, {r}"]
            else:
                out += [f"v_mul_f32 {vr(b+i)}, {vr(b+i)}, {vr(V_KT+2*qb)}" for i in range(4)]
            out += [f"v_cvt_pk_bf16_f32 {vr(b)}, {vr(b)}, {vr(b+1)}", f"v_cvt_pk_bf16_f32 {vr(b+1)}, {vr(b+2)}, {vr(b+3)}"]
        return out
    def stage_write(self, qb, db):
        return f"ds_write_b64 {vr(V_QA+db)}, {vr(V_O+32*qb+4*db,2)} offset:{4096*(qb%2)}"
    def readback(self, qb, i):
        d = vr(V_O + 32*qb + 16 + 4*i, 4)
        off = 4096*(qb % 2) + 1024*i
        if i < 2: return f"ds_read_b128 {d}, {vr(V_QD+i)} offset:{off}"
        return f"ds_read2_b64 {d}, {vr(V_QD+i)} offset0:{128*(i-2) + 1} offset1:{128*(i-2)}"
    def store(self, qb, i):
        if self.o.get('no_store'): return "s_nop 0"
        return f"buffer_store_dwordx4 {vr(V_O+32*qb+16+4*i,4)}, v9, {sr(SRD_O,4)}, {sr(self.QO[qb])} offen" + (f" offset:{1024*i}" if i else "") + self.o.get('st_flags', '')
    def lsum(self, qb):
        t = V_KT + 2*qb
        return [f"v_accvgpr_read_b32 {vr(t)}, {ar(A_L+4*qb)}", f"v_accvgpr_read_b32 {vr(t+1)}, {ar(A_L+4*qb+1)}",
                f"v_add_f32 {vr(t)}, {vr(t)}, {vr(t+1)}"]
    def epi_setup(self):
        out = []; e = out.append
        e(f"v_lshrrev_b32 v1, 5, {vr(V_LANE)}")
        e("v_xor_b32 v1, v1, v4")
        e("v_lshlrev_b32 v1, 4, v1")
        e("v_lshl_add_u32 v1, v4, 8, v1")
        e("v_lshrrev_b32 v11, 3, v4")
        e("v_xor_b32 v11, v11, v3")
        e("v_and_b32 v11, 1, v11")
        e("v_lshl_add_u32 v1, v11, 3, v1")
        e(f"v_add_u32 {vr(V_QA)}, {sr(S_T)}, v1")
        for db in range(1, 8):
            e(f"v_xor_b32 {vr(V_QA+db)}, {32*db}, {vr(V_QA)}")
        for i in range(4):
            e(f"v_add_u32 {vr(V_QD+i)}, {sr(S_T if i < 2 else S_T2)}, {vr(V_QD+i)}")
        e(f"v_lshlrev_b32 v9, 4, {vr(V_LANE)}")
        return out
    def finish_all(self, start):
        e = self.e
        nb = self.o['wbatch']
        pend = []
        for qb in range(start, 4):
            self.stamp(f'e{qb}')
            v = self.finish_block(qb, True)
            for g in range(8 // nb):
                for x in v[4*nb*g:4*nb*(g+1)]: e(x)
                if qb > 1 and g == 0:
                    for i in (2, 3): e(f"v_xor_b32 {vr(V_QD+i)}, 0x1000, {vr(V_QD+i)}")
                for x in pend: e(x)
                pend = [self.stage_write(qb, db) for db in range(nb*g, nb*(g+1))]
                if g == 8 // nb - 1:
                    pend += [self.readback(qb, i) for i in range(4)]
                if qb and g == 1:
                    pend = [f"s_waitcnt lgkmcnt({nb})"] + [self.store(qb-1, i) for i in range(2)] + pend
                if qb and g == min(2, 8 // nb - 1):
                    k = 0 if g != 1 else 3
                    pend = pend[:k] + [self.store(qb-1, i) for i in range(2, 4)] + pend[k:]
        for i in (2, 3): e(f"v_xor_b32 {vr(V_QD+i)}, 0x1000, {vr(V_QD+i)}")
        for x in pend: e(x)
        for i in range(4):
            e(f"s_waitcnt lgkmcnt({3-i})")
            e(self.store(3, i))

    def drain(self):
        e = self.e; o = self.o
        self.lab("L_drain")
        self.stamp('drain')
        for el in range(12, 16): e(self.sm_exp(3, el))
        e(f"s_lshl_b32 {sr(S_T)}, {sr(S_W)}, 13")
        for el in (13, 15): e(self.sm_cvt(3, el))
        e(f"s_add_u32 {sr(S_T)}, {sr(S_T)}, {LDS_O}")
        e(f"s_add_u32 {sr(S_T2)}, {sr(S_T)}, 2048")
        fill = self.lsum(0) + self.lsum(1) + self.lsum(2) + self.epi_setup()[:9] + self.lsum(3) + self.epi_setup()[9:]
        T = V_KT
        guard = [f"v_max3_f32 v1, {vr(T)}, {vr(T+2)}, {vr(T+4)}", f"v_add_f32 v11, {vr(T)}, {vr(T+2)}",
                 f"v_max_f32 v1, v1, {vr(T+6)}", f"v_add_f32 v10, {vr(T+4)}, {vr(T+6)}",
                 f"v_cmp_nle_f32 vcc, v1, {vr(V_G4)}", "v_add_f32 v11, v11, v10"]
        fill.insert(0, f"v_mov_b32 {vr(V_G4)}, {hex(f32bits(2.0**o['thr']))}")
        fill += guard
        for x in [self.mfma_sum(3)] + [self.mfma_pv(3, *vpos(k)) for k in range(16)]:
            e(x)
            for _ in range(2):
                if fill: e(fill.pop(0))
        while fill: e(fill.pop(0))
        e("v_cmp_u_f32 s[60:61], v11, v11")
        for qb in range(4): e(f"v_rcp_f32 {vr(T+2*qb)}, {vr(T+2*qb)}")
        e("s_or_b64 vcc, vcc, s[60:61]")
        e("s_cbranch_vccnz L_slow")
        self.lab("L_epi_ok")
        for qb in range(4): e(f"v_mov_b32 {vr(T+2*qb+1)}, {vr(T+2*qb)}")

    def epilogue(self):
        e = self.e; o = self.o
        self.stamp('epi')
        if o.get('stamp'): e("s_memrealtime s[30:31]")
        self.finish_all(0)
        if o.get('stamp'):
            self.stamp('stored')
            e("s_waitcnt vmcnt(0)")
            e("s_memtime s[62:63]")
            e("s_memrealtime s[64:65]")
            e("s_getreg_b32 s66, hwreg(HW_REG_XCC_ID)")
            e("s_getreg_b32 s67, hwreg(HW_REG_HW_ID)")
            e("s_waitcnt lgkmcnt(0)")
            e("v_mov_b32 v16, 0")
            n = self.nst
            for k in range(n):
                e(f"v_writelane_b32 v16, {sr(STAMP_REG[k])}, {k}")
            for k, r in enumerate((62, 64, 66, 67, 94, 24, 30)):
                e(f"v_writelane_b32 v16, s{r}, {n+k}")
            e(f"s_lshl_b32 {sr(S_T)}, s2, 2")
            e(f"s_add_u32 {sr(S_T)}, {sr(S_T)}, {sr(S_W)}")
            e(f"s_lshl_b32 {sr(S_T)}, {sr(S_T)}, 8")
            e(f"v_lshlrev_b32 v17, 2, {vr(V_LANE)}")
            e(f"buffer_store_dword {'v255' if o.get('pstamp') else 'v16'}, v17, {sr(SRD_D,4)}, {sr(S_T)} offen")
        self.lab("L_end")
        e("s_endpgm")
        self.L += getattr(self, 'var1', [])
        self.lab("L_code_end")
        self.L += self.ool
        self.slow()
        for sfx in self.sfxs:
            for qb in range(4):
                self.lab(f"L_zeroq{qb}{sfx}")
                for i in range(16):
                    e(f"v_accvgpr_write_b32 {ar(A_Q+16*qb+i)}, 0")
                e("s_nop 1")
                e(f"s_branch L_zeroq_ret{qb}{sfx}")

    def slow(self):
        e = self.e
        KA2 = 12; VA2 = V_VA
        SS = lambda qb: V_S + 8*qb
        ST, SN, SP, PGA, PGB = 76, 77, 78, 79, 80
        e_nop = lambda: e("s_nop 7")
        self.lab("L_slow")
        e("s_waitcnt vmcnt(0) lgkmcnt(0)")
        for s in range(4):
            e(f"v_add_u32 {vr(KA2+s)}, {sr(S_DMAB)}, {vr(V_KA+s)}")
        for db in range(8):
            e(f"v_add_u32 {vr(VA2+db)}, {sr(S_DMAB)}, {vr(V_VA+db)}")
        for i in range(16):
            e(f"v_mov_b32 {vr(V_P+i)}, 0")
        for qb in range(4):
            e(f"v_mov_b32 {vr(V_NEGM+4*qb)}, {vr(V_NINF)}")
        e(f"s_add_u32 {sr(SN)}, {sr(S_CL)}, 31")
        e(f"s_lshr_b32 {sr(SN)}, {sr(SN)}, 5")
        e(f"s_mov_b32 {sr(SP)}, 0")
        Z = ar(A_Z, 4)
        for i in range(8):
            e(f"v_mfma_f32_32x32x16_bf16 {vr(V_O+16*i,16)}, {Z}, {Z}, 0")
        e(f"v_mfma_f32_32x32x16_bf16 {ar(A_L,16)}, {Z}, {Z}, 0")
        self.lab("L_slow_pass")
        e(f"s_mov_b32 {sr(ST)}, 0")
        self.lab("L_slow_tile")
        e(f"s_lshl_b32 {sr(S_T2)}, {sr(ST)}, 3")
        e(f"s_load_dwordx2 s[82:83], {sr(S_PTR+6,2)}, {sr(S_T2)}")
        e(f"s_lshl_b32 {sr(S_T2)}, {sr(ST)}, 5")
        e(f"s_sub_u32 {sr(S_T2)}, {sr(S_CL)}, {sr(S_T2)}")
        e(f"v_lshlrev_b32 v10, 2, v3")
        e(f"v_sub_u32 v10, {sr(S_T2)}, v10")
        e("s_waitcnt lgkmcnt(0)")
        e(f"s_cmp_gt_u32 {sr(S_T2)}, 16")
        e("s_cselect_b32 s83, s83, 0")
        for r, d in ((82, PGA), (83, PGB)):
            e(f"s_min_u32 s{r}, s{r}, 0x83")
            e(f"s_lshl_b32 s{r}, s{r}, 16")
            e(f"s_add_u32 {sr(d)}, s{r}, {sr(S_HEAD)}")
        for kind in 'KV':
            for st, off in ((0, PGA), (1, PGB)):
                for x in self.base(kind, off): e(x)
                e(self.m0(kind, st)); e("s_nop 0")
                for i in range(4): e(self.dma(kind, i))
        for j in range(8):
            e(f"v_cmp_lt_i32 {sr(S_MASK+2*j,2)}, {16*(j//4)+j%4}, v10")
        e("s_waitcnt vmcnt(0)")
        for db in range(8):
            for u in range(2):
                e(f"ds_read_b64_tr_b16 {ar(A_V+8*db+2*u,2)}, {vr(VA2+db)} offset:{16384*u}")
            if db % 4 == 3: e("s_waitcnt lgkmcnt(0)")
        for kb in range(2):
            for s in range(4):
                e(f"ds_read_b128 {vr(V_KT+4*s,4)}, {vr(KA2+s)} offset:{16384*kb}")
            e("s_waitcnt lgkmcnt(0)")
            for qb in range(4):
                for s in range(4):
                    d = vr(SS(qb) + 4*kb, 4)
                    e(f"{MF} {d}, {vr(V_KT+4*s,4)}, {ar(A_Q+16*qb+4*s,4)}, {d if s else 0}")
        e_nop()
        e(f"s_cmp_eq_u32 {sr(S_ZERO)}, 0")
        e("s_cbranch_scc1 L_slow_nz")
        for qb in range(4):
            for j in range(8):
                e(f"v_mov_b32 {vr(SS(qb)+j)}, 0")
        self.lab("L_slow_nz")
        for qb in range(4):
            for j in range(8):
                e(f"v_cndmask_b32 {vr(SS(qb)+j)}, {vr(V_NINF)}, {vr(SS(qb)+j)}, {sr(S_MASK+2*j,2)}")
        e(f"s_cmp_eq_u32 {sr(SP)}, 0")
        e("s_cbranch_scc0 L_slow_p1")
        for qb in range(4):
            for j in range(0, 8, 2):
                e(f"v_max3_f32 {vr(V_NEGM+4*qb)}, {vr(V_NEGM+4*qb)}, {vr(SS(qb)+j)}, {vr(SS(qb)+j+1)}")
        e("s_branch L_slow_next")
        self.lab("L_slow_p1")
        for qb in range(4):
            for j in range(8):
                e(f"v_sub_f32 {vr(SS(qb)+j)}, {vr(SS(qb)+j)}, {vr(V_NEGM+4*qb)}")
            for j in range(8): e(f"v_exp_f32 {vr(SS(qb)+j)}, {vr(SS(qb)+j)}")
            e("s_nop 0")
            for j in range(4): e(f"v_cvt_pk_bf16_f32 {vr(PB(qb)+j)}, {vr(SS(qb)+2*j)}, {vr(SS(qb)+2*j+1)}")
            e("s_nop 1")
            e(self.mfma_sum(qb))
            for db in range(8): e(self.mfma_pv(qb, db, 0))
        self.lab("L_slow_next")
        e(f"s_add_u32 {sr(ST)}, {sr(ST)}, 1")
        e(f"s_cmp_lt_u32 {sr(ST)}, {sr(SN)}")
        e("s_cbranch_scc1 L_slow_tile")
        e(f"s_cmp_eq_u32 {sr(SP)}, 0")
        e("s_cbranch_scc0 L_slow_done")
        for sw in ("v_permlane32_swap_b32", "v_permlane16_swap_b32"):
            for qb in range(4): e(f"v_mov_b32 {vr(V_NEGM+4*qb+1)}, {vr(V_NEGM+4*qb)}")
            e("s_nop 1")
            for qb in range(4): e(f"{sw} {vr(V_NEGM+4*qb)}, {vr(V_NEGM+4*qb+1)}")
            for qb in range(4): e(f"v_max_f32 {vr(V_NEGM+4*qb)}, {vr(V_NEGM+4*qb)}, {vr(V_NEGM+4*qb+1)}")
        e(f"s_mov_b32 {sr(SP)}, 1")
        e("s_branch L_slow_pass")
        self.lab("L_slow_done")
        e_nop(); e_nop()
        for qb in range(4):
            for x in self.lsum(qb): e(x)
        for qb in range(4): e(f"v_rcp_f32 {vr(V_KT+2*qb)}, {vr(V_KT+2*qb)}")
        e("s_nop 0")
        e("s_branch L_epi_ok")

    def build(self):
        self.prologue()
        if self.o.get('align'):
            self.L.append(f".p2align {self.o['align']}")
        self.lab("L_loop")
        for j in range(NST):
            self.period(j)
            if j < NST - 1:
                self.e("s_cbranch_scc1 L_drain")
            else:
                self.e("s_cbranch_scc0 L_loop")
        self.drain()
        self.epilogue()
        body = "\n".join(self.L)
        return (HEADER + f"; @launch grid=(256,1,1) block=(256,1,1) lds={LDS_O+32768}\n"
                ".amdgcn_target \"amdgcn-amd-amdhsa--gfx950\"\n.text\n"
                f".globl {NAME}_kernel\n.p2align 8\n.type {NAME}_kernel,@function\n{NAME}_kernel:\n"
                + body + "\n"
                ".section .rodata,\"a\"\n.p2align 6\n"
                f".amdhsa_kernel {NAME}_kernel\n"
                "  .amdhsa_next_free_vgpr 512\n  .amdhsa_next_free_sgpr 102\n  .amdhsa_accum_offset 256\n"
                "  .amdhsa_group_segment_fixed_size 0\n  .amdhsa_kernarg_size 64\n  .amdhsa_user_sgpr_count 2\n"
                "  .amdhsa_user_sgpr_kernarg_segment_ptr 1\n  .amdhsa_system_sgpr_workgroup_id_x 1\n"
                ".end_amdhsa_kernel\n")


DEFAULT = dict(wbatch=2, thr=30, kindbit=7, nq_early2=0, ld_a2='k0 v0 k1 v1 q0', seq2='L:q1,q2 s0:q3 A:k0,v0,k1,v1 s1 Q01:V0 P01:V1,K1,k2,v2 s2 Q2 P2:k3 s3 Q3',
    stamps=['start','karg','bt','issued','prebar','loop','epi','stored'], w1=49, w1frags=12, bar_slot=58, mixinit=True, nq_early=2, ld_a='k0 v0', seq='s0:q2 s1:q3 A:k0,v0 Q01:V0 P01:V1,k1,v1 s2 Q2 P2:k2 B:k1,v1 R:K1 s3:v2,k3 Q3', pf=True, st_flags=' sc0 sc1 nt')

def parse_opts(args):
    o = dict(DEFAULT)
    for a in args:
        k, _, v = a.partition("=")
        if v == "": o[k] = True
        else:
            try: o[k] = eval(v)
            except Exception: o[k] = v
    return o

if __name__ == "__main__":
    o = parse_opts(sys.argv[2:])
    open(sys.argv[1], "w").write(Gen(o).build())
```

```python
import sys, struct, math

NAME = "standalone__paged_block_table_kv_pagedattention__prompt"

HEADER = """; Kernarg layout for this problem (64 bytes, ptrs only, base s[0:1]):
"""

def f32bits(x):
    return struct.unpack("<I", struct.pack("<f", x))[0]

S_W = 3; S_CL = 4; S_N = 5; S_REM = 6; S_T = 7; S_IDX = 8; S_END = 9
S_OFF = 10; S_T3 = 11; S_DMAB = 12; S_DMAV = 13; S_ROW = 14; S_HEAD = 15
S_PTR = 16
P_K = 18; P_V = 20
S_C = 32
S_T2 = 34; S_ZERO = 35
SRD_Q = 36; S_KB = 40; S_VB = 42; SRD_X = 44; SRD_O = 48; SRD_BT = 52; SRD_D = 56
S_MASK = 60
STAMP_REG = [92, 96, 98, 100, 16, 26, 28, 52, 54, 36]
V_LANE = 2
V_S = 16; V_P = 48; V_NEGM = 64; V_O = 128
V_KA = 80; V_VA = 84; V_DK = 92; V_DVV = 96; V_BT = 100
V_IDX = 101; V_NINF = 102; V_G4 = 103; V_KT = 104
V_MS = [12, 14, 12, 14]
V_QD = 5
V_QA = 120
QSLICE = [16384, 65536 + 16384, 32768, 65536 + 32768]
LDS_O = 131072
A_K = 0; A_V = 64; A_Q = 128; A_L = 192; A_ONES = 208; A_Z = 212
def SB(qb): return V_S + 16*(qb % 2)
def PB(qb): return V_P + 8*(qb % 2)

NST = 3
LDS_V = 65536
KV_BYTES = 132 * 65536
Q_BYTES = 16777216

def vr(b, n=1): return f"v{b}" if n == 1 else f"v[{b}:{b+n-1}]"
def ar(b, n=1): return f"a{b}" if n == 1 else f"a[{b}:{b+n-1}]"
def sr(b, n=1): return f"s{b}" if n == 1 else f"s[{b}:{b+n-1}]"
MF = "v_mfma_f32_16x16x32_bf16"

PATTERN = (
    "e e c D e e c D e e c D e e c D e e "
    "vc vv e vv e vc vv e vv e vc vv e vv e vc vv e vv e vc vv e vv e vc vv e vv e vc v "
    "e e cr e e c e e - c D e e c e e c D e e c e e c "
    "D e e c - e e c D e - e c e - e c e - e c e - e c e "
    "k e kc e kk e kc kk e kk e kc e kk e kc e kk e kc e - e c e e c e - e c -"
).split()
NS = 132
assert len(PATTERN) == NS, len(PATTERN)
def kpos(j):
    kb, s = j // 4, j % 4
    return kb, (3 - s if kb % 2 else s)
def vpos(j):
    db, ks = j // 2, j % 2
    return db, (1 - ks if db % 2 else ks)


class Gen:
    def __init__(self, opt):
        self.o = opt
        self.L = []
        self.nst = 0
        self.vm = []
        self.ool = []
        self.stored = set()
    def e(self, s): self.L.append("    " + s)
    def lab(self, s): self.L.append(s + ":")
    def c(self, s): self.L.append("    ; " + s)
    def vmem(self, s, tag):
        self.e(s); self.vm.append(tag)
    def vmwait(self, *tags):
        last = max(i for i, t in enumerate(self.vm) if t in tags)
        self.e(f"s_waitcnt vmcnt({len(self.vm) - 1 - last})")

    def mfma_qk(self, qb, kb, s, first=False, head=None):
        d = vr(SB(qb) + 4*kb, 4)
        if head is None: head = s == 0
        c = d if not head else ("0" if first else vr(V_NEGM + 4*qb, 4))
        a = vr(V_KT + 4*s, 4) if first else ar(A_K + 4*(4*kb+s), 4)
        return f"{MF} {d}, {a}, {ar(A_Q+16*qb+4*s,4)}, {c}"
    def mfma_pv(self, qb, db, ks, first=False):
        d = vr(V_O + 32*qb + 4*db, 4)
        return f"{MF} {d}, {ar(A_V+4*(2*db+ks),4)}, {vr(PB(qb)+4*ks,4)}, {'0' if first else d}"
    def mfma_sum(self, qb):
        return f"v_smfmac_f32_16x16x64_bf16 {ar(A_L+4*qb,4)}, {ar(A_ONES,4)}, {vr(PB(qb),8)}, {vr(V_IDX)}"
    def kread(self, f, stage, temp=False):
        kb, s = f // 4, f % 4
        d = vr(V_KT + 4*s, 4) if temp else ar(A_K + 4*f, 4)
        return f"ds_read_b128 {d}, {vr(V_KA+s)} offset:{stage*16384+kb*4096}"
    def vread(self, i, stage):
        f, u = i // 2, i % 2
        db, ks = f // 2, f % 2
        return f"ds_read_b64_tr_b16 {ar(A_V+4*f+2*u,2)}, {vr(V_VA+db)} offset:{stage*16384+(32*ks+16*u)*256}"
    def dma(self, kind, i):
        v, b = (V_DK, S_KB) if kind == 'K' else (V_DVV, S_VB)
        return f"global_load_lds_dwordx4 {vr(v+i)}, {sr(b,2)}" + (f" offset:{1024*i}" if i else "") + self.o.get('ld_flags', '')
    def m0(self, kind, stage):
        return f"s_add_u32 m0, {sr(S_DMAB if kind == 'K' else S_DMAV)}, {stage*16384}"
    def base(self, kind, soff):
        b, p = (S_KB, P_K) if kind == 'K' else (S_VB, P_V)
        return [f"s_add_u32 {sr(b)}, {sr(p)}, {sr(soff)}", f"s_addc_u32 {sr(b+1)}, {sr(p+1)}, 0"]
    def sm_exp(self, qb, e):
        r = SB(qb) + e
        return f"v_exp_f32 {vr(r)}, {vr(r)}"
    def sm_cvt(self, qb, e):
        r = SB(qb) + e
        return f"v_cvt_pk_bf16_f32 {vr(PB(qb)+e//2)}, {vr(r-1)}, {vr(r)}"
    def stamp(self, name):
        if self.o.get('stamp') and name in self.o['stamps']:
            self.e(f"s_memtime {sr(STAMP_REG[self.nst],2)}")
            self.nst += 1
    def group(self, kind, stage, soff, tag):
        for x in self.base(kind, soff): self.e(x)
        self.e(self.m0(kind, stage))
        self.e("s_nop 0")
        for i in range(4): self.vmem(self.dma(kind, i), tag)
        self.stamp('i' + tag)

    def ool_begin(self, name, limit):
        self.e(f"s_cmp_gt_u32 {sr(S_REM)}, {limit}")
        self.e(f"s_cbranch_scc1 {name}_more")
        self.inline = self.L; self.L = self.ool
        self.lab(f"{name}_more")
    def ool_end(self, name):
        self.e(f"s_branch {name}")
        self.L = self.inline
        self.lab(name)

    def emit_load(self, item):
        for x, tag in item:
            if tag: self.vmem(x, tag)
            else: self.e(x)

    def scale_q(self, qb):
        out = []; e = out.append
        for s in range(4):
            TA = SB(qb) + 8*(s % 2)
            e(f"s_waitcnt lgkmcnt({3-s})")
            for i in range(4):
                q = SB(qb+1) + 4*s + i
                e(f"v_lshlrev_b32 {vr(TA+2*i)}, 16, {vr(q)}")
                e(f"v_and_b32 {vr(TA+2*i+1)}, 0xffff0000, {vr(q)}")
            for i in range(4):
                e(f"v_pk_mul_f32 {vr(TA+2*i,2)}, {vr(TA+2*i,2)}, {sr(S_C,2)}")
            for i in range(4):
                e(f"v_cvt_pk_bf16_f32 {vr(TA+2*i)}, {vr(TA+2*i)}, {vr(TA+2*i+1)}")
            for i in range(4):
                e(f"v_accvgpr_write_b32 {ar(A_Q+16*qb+4*s+i)}, {vr(TA+2*i)}")
        return out

    def first_qk(self, blocks, shadow=()):
        e = self.e; tag = ''.join(map(str, blocks))
        self.done_q += tag
        tag += self.sfx
        M = {qb: V_MS[qb] for qb in blocks}
        shadow = list(shadow)
        if 3 in blocks:
            for i in range(4):
                e(f"v_mov_b32 {vr(SB(3)+12+i)}, {vr(V_NINF)}")
        for kb in range(4):
            if kb == 1: self.ool_begin(f"L_fa{tag}", 16)
            if kb > 1:
                e(f"s_cmp_le_u32 {sr(S_REM)}, {16*kb}")
                e(f"s_cbranch_scc1 L_fa{tag}")
            if kb:
                for s in range(4): e(self.kread(4*kb+s, 3, temp=True))
            e("s_waitcnt lgkmcnt(0)")
            if kb == 0: e("s_nop 0")
            for qb in blocks:
                for s in range(4):
                    e(self.mfma_qk(qb, kb, s, first=True))
                    if kb == 0:
                        for _ in range(2):
                            if shadow: e(shadow.pop(0))
            if kb == 0 and shadow:
                e("s_waitcnt lgkmcnt(6)")
                n = len(shadow)
                while shadow: e(shadow.pop(0))
                if n < 7 and len(blocks) < 3: e(f"s_nop {7-n}")
            elif len(blocks) < 3:
                e("s_nop 7")
            for qb in blocks:
                S = SB(qb) + 4*kb
                for r in range(4):
                    e(f"v_cndmask_b32 {vr(S+r)}, {vr(V_NINF)}, {vr(S+r)}, {sr(S_MASK+2*(4*kb+r),2)}")
                if kb == 0:
                    e(f"v_max3_f32 {vr(M[qb])}, {vr(S)}, {vr(S+1)}, {vr(S+2)}")
                    e(f"v_max_f32 {vr(M[qb])}, {vr(M[qb])}, {vr(S+3)}")
                else:
                    e(f"v_max3_f32 {vr(M[qb])}, {vr(M[qb])}, {vr(S)}, {vr(S+1)}")
                    e(f"v_max3_f32 {vr(M[qb])}, {vr(M[qb])}, {vr(S+2)}, {vr(S+3)}")
        self.ool_end(f"L_fa{tag}")
        if 3 not in blocks:
            for s in range(4): e(self.kread(s, 3, temp=True))
        for sw in ("v_permlane32_swap_b32", "v_permlane16_swap_b32"):
            for qb in blocks: e(f"v_mov_b32 {vr(M[qb]+1)}, {vr(M[qb])}")
            e("s_nop 1" if len(blocks) < 2 else "s_nop 0")
            for qb in blocks: e(f"{sw} {vr(M[qb])}, {vr(M[qb]+1)}")
            for qb in blocks: e(f"v_max_f32 {vr(M[qb])}, {vr(M[qb])}, {vr(M[qb]+1)}")
        for qb in blocks:
            for r in range(4):
                e(f"v_sub_f32 {vr(V_NEGM+4*qb+r)}, 0, {vr(M[qb])}")
        for kb in range(4):
            if kb == 1: self.ool_begin(f"L_fb{tag}", 16)
            if kb > 1:
                e(f"s_cmp_le_u32 {sr(S_REM)}, {16*kb}")
                e(f"s_cbranch_scc1 L_fb{tag}")
            for qb in blocks:
                S = SB(qb) + 4*kb
                for r in range(4):
                    e(f"v_sub_f32 {vr(S+r)}, {vr(S+r)}, {vr(M[qb])}")
                if kb == 3 and qb == 3:
                    continue
                for r in range(4):
                    e(self.sm_exp(qb, 4*kb+r))
            if len(blocks) < 2: e("s_nop 0")
            for qb in blocks:
                if kb == 3 and qb == 3:
                    continue
                for r in (1, 3):
                    e(self.sm_cvt(qb, 4*kb+r))
        self.ool_end(f"L_fb{tag}")

    def first_pv(self, blocks, shadow):
        e = self.e; tag = ''.join(map(str, blocks)) + self.sfx
        shadow = list(shadow)
        for ks in range(2):
            if ks:
                self.ool_begin(f"L_fc{tag}", 32)
                e("s_waitcnt lgkmcnt(0)")
            for qb in blocks:
                for x in ([self.mfma_sum(qb)] if ks == 0 else []) + [self.mfma_pv(qb, db, ks, first=(ks == 0)) for db in range(8)]:
                    e(x)
                    if ks == 0 and shadow: self.emit_load(shadow.pop(0))
            if ks == 0:
                while shadow: self.emit_load(shadow.pop(0))
        self.ool_end(f"L_fc{tag}")

    def prologue(self):
        e = self.e; o = self.o
        e("s_cmp_ge_u32 s2, 256")
        e("s_cbranch_scc1 L_end")
        e(f"s_load_dwordx16 {sr(S_PTR,16)}, s[0:1], 0")
        self.stamp('start')
        if o.get('stamp'):
            e("s_memrealtime s[94:95]")
        if o.get('pf'):
            e("s_getpc_b64 s[66:67]")
            self.lab("L_pc")
            e("v_lshlrev_b32 v14, 7, v0")
            e("v_min_u32 v14, L_code_end-L_pc-4, v14")
            self.vmem("global_load_dword v15, v14, s[66:67]", 'pf')
        e("v_lshrrev_b32 v1, 6, v0")
        e(f"v_and_b32 {vr(V_LANE)}, 63, v0")
        e(f"v_readfirstlane_b32 {sr(S_W)}, v1")
        e(f"s_and_b32 {sr(S_T)}, s2, 7")
        e(f"s_lshl_b32 {sr(S_T)}, {sr(S_T)}, 1")
        e(f"s_bfe_u32 {sr(S_HEAD)}, s2, 0x10003")
        e(f"s_add_u32 {sr(S_HEAD)}, {sr(S_HEAD)}, {sr(S_T)}")
        e(f"s_lshr_b32 {sr(S_T)}, s2, 4")
        e(f"s_lshl4_add_u32 {sr(S_ROW)}, {sr(S_HEAD)}, {sr(S_T)}")
        e(f"s_lshl2_add_u32 {sr(S_ROW)}, {sr(S_ROW)}, {sr(S_W)}")
        e(f"s_lshl_b32 {sr(S_ROW)}, {sr(S_ROW)}, 14")
        e(f"s_lshl_b32 {sr(S_DMAB)}, {sr(S_W)}, 12")
        e(f"v_lshrrev_b32 v3, 4, {vr(V_LANE)}")
        e(f"v_and_b32 v4, 15, {vr(V_LANE)}")
        e("v_xor_b32 v11, v4, v3")
        e("v_lshlrev_b32 v11, 4, v11")
        e(f"v_lshl_add_u32 {vr(V_QD)}, v3, 8, v11")
        e(f"v_and_b32 v9, 31, {vr(V_LANE)}")
        e(f"s_lshl_b32 {sr(S_T2)}, {sr(S_W)}, 2")
        e(f"v_lshl_add_u32 v9, v9, 4, {sr(S_T2)}")
        e(f"s_mov_b32 {sr(SRD_BT+2)}, 512")
        e(f"s_mov_b32 {sr(SRD_BT+3)}, 0x20000")
        e(f"s_mov_b32 {sr(SRD_Q+2)}, {Q_BYTES}")
        e(f"s_mov_b32 {sr(SRD_Q+3)}, 0x20000")
        for i in range(1, 4):
            e(f"v_xor_b32 {vr(V_QD+i)}, {64*i}, {vr(V_QD)}")
        e(f"s_add_u32 m0, {sr(S_DMAB)}, {QSLICE[0]}")
        e("s_waitcnt lgkmcnt(0)")
        self.stamp('karg')
        def srdbase(b, p):
            e(f"s_mov_b32 {sr(b)}, {sr(p)}")
            e(f"s_and_b32 {sr(b+1)}, {sr(p+1)}, 0xffff")
        srdbase(SRD_BT, S_PTR+6)
        self.vmem(f"buffer_load_dword {vr(V_BT)}, v9, {sr(SRD_BT,4)}, 0 offen", 'bt')
        e(f"s_load_dword {sr(S_CL)}, {sr(S_PTR+8,2)}, 0")
        srdbase(SRD_Q, S_PTR+0)
        if o.get('tlb'):
            e(f"v_and_b32 v14, 7, {vr(V_LANE)}")
            e(f"v_lshlrev_b32 v14, 20, v14")
            self.vmem(f"global_load_dword v15, v14, {sr(P_K,2)}", 'tlb')
            self.vmem(f"global_load_dword v15, v14, {sr(P_V,2)}", 'tlb')
        QO = [S_ROW, 45, 46, 47]
        self.QO = QO
        def qload(qb, first=False):
            g = [[(f"buffer_load_dwordx4 {vr(V_QD+i)}, {sr(SRD_Q,4)}, {sr(QO[qb])} offen" + (f" offset:{1024*i}" if i else "") + o.get('q_flags', '') + " lds", f'q{qb}')] for i in range(4)]
            if not first:
                g[0] = [(f"s_add_u32 m0, {sr(S_DMAB)}, {QSLICE[qb]}", None), (f"s_add_u32 {sr(QO[qb])}, {sr(S_ROW)}, {4096*qb}", None)] + g[0]
            return g
        def grp(kind, stage, soff, tag):
            g = [[(self.dma(kind, i), tag)] for i in range(4)]
            g[0] = [(x, None) for x in self.base(kind, soff)] + [(self.m0(kind, stage), None), ("s_nop 0", None)] + g[0]
            return g
        self.grp = grp
        def mix(work, loads):
            n = len(loads); k = 0
            for i, x in enumerate(work):
                while k < n and k * len(work) <= i * n:
                    self.emit_load(loads[k]); k += 1
                e(x)
            while k < n:
                self.emit_load(loads[k]); k += 1
        init = []
        a = init.append
        a(f"s_lshl_b32 {sr(S_HEAD)}, {sr(S_HEAD)}, 8")
        a(f"s_add_u32 {sr(S_DMAV)}, {sr(S_DMAB)}, {LDS_V}")
        a(f"s_mov_b32 {sr(SRD_O+2)}, {Q_BYTES}")
        a(f"s_mov_b32 {sr(SRD_O+3)}, 0x20000")
        a(f"v_lshl_add_u32 {vr(V_DK)}, v3, 12, v11")
        a(f"v_lshl_add_u32 {vr(V_KA)}, v4, 8, v11")
        a("v_lshlrev_b32 v1, 1, v3")
        a("v_xor_b32 v1, v4, v1")
        a("v_lshlrev_b32 v1, 4, v1")
        a(f"v_lshl_add_u32 {vr(V_DVV)}, v3, 12, v1")
        for i in range(1, 4):
            a(f"v_xor_b32 v1, {64*i}, {vr(V_DK)}")
            a(f"v_add_u32 {vr(V_DK+i)}, {15360*i}, v1")
            if i % 2:
                a(f"v_xor_b32 v1, 0x80, {vr(V_DVV)}")
                a(f"v_add_u32 {vr(V_DVV+i)}, {15360*i}, v1")
            else:
                a(f"v_add_u32 {vr(V_DVV+i)}, {15360*i}, {vr(V_DVV)}")
        a(f"v_lshlrev_b32 {vr(V_G4)}, 2, v3")
        for s in range(1, 4):
            a(f"v_xor_b32 {vr(V_KA+s)}, {64*s}, {vr(V_KA)}")
        for s in range(4):
            a(f"v_add_u32 {vr(V_QA+s)}, {sr(S_DMAB)}, {vr(V_KA+s)}")
            a(f"v_add_u32 {vr(V_QA+4+s)}, {sr(S_DMAV)}, {vr(V_KA+s)}")
        a(f"v_lshrrev_b32 v1, 2, {vr(V_LANE)}")
        a("v_and_b32 v11, 7, v1")
        a("v_lshlrev_b32 v11, 5, v11")
        a("v_lshl_add_u32 v11, v1, 8, v11")
        a("v_and_b32 v1, 3, v4")
        a("v_lshl_add_u32 v11, v1, 3, v11")
        a(f"v_add_u32 {vr(V_VA)}, {LDS_V}, v11")
        for db in range(1, 8):
            a(f"v_xor_b32 {vr(V_VA+db)}, {32*db}, {vr(V_VA)}")
        a(f"v_mov_b32 {vr(V_NINF)}, 0xff800000")
        c = (1.0/math.sqrt(128.0)) * math.log2(math.e)
        a(f"s_mov_b32 {sr(S_C)}, {hex(f32bits(c))}")
        a(f"s_mov_b32 {sr(S_C+1)}, {hex(f32bits(c))}")
        a("v_mov_b32 v1, 0x3f803f80")
        for i in range(4):
            a(f"v_accvgpr_write_b32 {ar(A_Z+i)}, 0")
            a(f"v_accvgpr_write_b32 {ar(A_ONES+i)}, v1")
        a(f"v_and_b32 v1, 1, {vr(V_LANE)}")
        a(f"v_mul_u32_u24 v1, 0xaaaa, v1")
        a(f"v_add_u32 v1, 0x4444, v1")
        a(f"v_lshl_or_b32 {vr(V_IDX)}, v1, 16, v1")
        variants = [dict(nq_early=o['nq_early'], ld_a=o['ld_a'], seq=o['seq'])]
        if o.get('seq2'):
            variants.append(dict(nq_early=o['nq_early2'], ld_a=o['ld_a2'], seq=o['seq2']))
            e(f"s_bitcmp{0 if o.get('kindinv') else 1}_b32 s2, {o['kindbit']}")
            e("s_cbranch_scc1 L_var1")
        vm0, nst0 = list(self.vm), self.nst
        self.sfxs = []
        def variant(V):
            early = []
            for qb in range(V['nq_early']): early += qload(qb, qb == 0)
            if o.get('mixinit'):
                mix(init, early)
            else:
                mix([], early); mix(init, [])
            srdbase(SRD_O, S_PTR+10)
            if o.get('tlbo'):
                e(f"v_mov_b32 v14, {sr(S_ROW)}")
                self.vmem(f"global_load_dword v15, v14, {sr(S_PTR+10,2)}", 'tlbo')
            if o.get('stamp'):
                srdbase(SRD_D, S_PTR+14)
                e(f"s_mov_b32 {sr(SRD_D+2)}, 268435456")
                e(f"s_mov_b32 {sr(SRD_D+3)}, 0x20000")
            Z = ar(A_Z, 4)
            e(f"v_mfma_f32_32x32x16_bf16 {ar(A_L,16)}, {Z}, {Z}, 0")
            e(f"v_mfma_f32_32x32x16_bf16 {vr(V_P,16)}, {Z}, {Z}, 0")
            for i in range(2):
                e(f"v_mfma_f32_32x32x16_bf16 {vr(V_O+96+16*i,16)}, {Z}, {Z}, 0")
            e("s_waitcnt lgkmcnt(0)")
            e(f"s_cmp_le_i32 {sr(S_CL)}, 0")
            e(f"s_cselect_b32 {sr(S_ZERO)}, 1, 0")
            e(f"s_cselect_b32 {sr(S_CL)}, 0x800, {sr(S_CL)}")
            e(f"s_min_u32 {sr(S_CL)}, {sr(S_CL)}, 0x800")
            e(f"s_add_u32 {sr(S_N)}, {sr(S_CL)}, 63")
            e(f"s_lshr_b32 {sr(S_N)}, {sr(S_N)}, 6")
            e(f"s_sub_u32 {sr(S_IDX)}, {sr(S_N)}, 1")
            e(f"s_lshl_b32 {sr(S_T2)}, {sr(S_IDX)}, 6")
            e(f"s_sub_u32 {sr(S_REM)}, {sr(S_CL)}, {sr(S_T2)}")
            e(f"s_add_u32 {sr(S_END)}, {sr(S_N)}, 2")
            e("v_lshlrev_b32 v9, 2, v9")
            e(f"v_cmp_gt_u32 vcc, {sr(S_CL)}, v9")
            e(f"v_sub_u32 v10, {sr(S_REM)}, {vr(V_G4)}")
            self.vmwait('bt')
            self.stamp('bt')
            e(f"v_cndmask_b32 {vr(V_BT)}, 0, {vr(V_BT)}, vcc")
            e(f"v_min_u32 {vr(V_BT)}, 0x83, {vr(V_BT)}")
            e(f"v_lshlrev_b32 {vr(V_BT)}, 16, {vr(V_BT)}")
            e(f"v_add_u32 {vr(V_BT)}, {sr(S_HEAD)}, {vr(V_BT)}")
            e("s_nop 0")
            T0, T1, T2, T3 = S_T, S_T3, 44, S_OFF
            e(f"v_readlane_b32 {sr(T0)}, {vr(V_BT)}, {sr(S_IDX)}")
            e(f"v_readlane_b32 {sr(T1)}, {vr(V_BT)}, 0")
            e(f"v_readlane_b32 {sr(T2)}, {vr(V_BT)}, 1")
            e(f"v_readlane_b32 {sr(T3)}, {vr(V_BT)}, 2")
            e(f"s_mov_b32 {sr(S_IDX)}, 3")
            masks = [f"v_cmp_lt_i32 {sr(S_MASK+2*(4*kb+r),2)}, {16*kb+r}, v10" for kb in range(4) for r in range(4)]
            G = dict(k0=grp('K', 3, T0, 'k0'), v0=grp('V', 3, T0, 'v0'), k1=grp('K', 0, T1, 'k1'), v1=grp('V', 0, T1, 'v1'),
                     k2=grp('K', 1, T2, 'k2'), v2=grp('V', 1, T2, 'v2'), k3=grp('K', 2, T3, 'k3'))
            for qb in range(4): G[f'q{qb}'] = qload(qb)
            def loads(names):
                out = []
                for n in names.split(): out += G[n]
                return out
            def scale(qb, names=""):
                self.vmwait(f'q{qb}')
                self.stamp(f'q{qb}')
                for s in range(4):
                    e(f"ds_read_b128 {vr(SB(qb+1)+4*s,4)}, {vr(V_QA+4*(qb%2)+s)} offset:{16384*(1+qb//2)}")
                mix(self.scale_q(qb), loads(names))
                e(f"s_cmp_eq_u32 {sr(S_ZERO)}, 1")
                e(f"s_cbranch_scc1 L_zeroq{qb}{self.sfx}")
                self.lab(f"L_zeroq_ret{qb}{self.sfx}")
            mix(masks, loads(V['ld_a']))
            self.stamp('lda')
            v0 = [self.vread(i, 3) for i in range(32) if (i // 2) % 2 == 0]
            v1 = [self.vread(i, 3) for i in range(32) if (i // 2) % 2 == 1]
            k1 = [self.kread(f, 0) for f in range(16)]
            RD = dict(V0=v0, V1=v1, K1=k1)
            for step in V['seq'].split():
                name, _, arg = step.partition(':')
                args = [x for x in arg.split(',') if x]
                if name[0] == 's':
                    scale(int(name[1]), ' '.join(args))
                elif name in 'AB':
                    self.vmwait(*args)
                    e("s_barrier")
                    self.stamp('bar' + name)
                    if name == 'A':
                        for s in range(4): e(self.kread(s, 3, temp=True))
                elif name[0] == 'Q':
                    self.first_qk([int(x) for x in name[1:]], sum((RD[x] for x in args), []))
                    self.stamp(name)
                elif name[0] == 'P':
                    rd = sum((RD[x] for x in args if x in RD), [])
                    dm = loads(' '.join(x for x in args if x not in RD))
                    sh = []
                    nm = 9 * (len(name) - 1)
                    e("s_waitcnt lgkmcnt(4)" if '3' not in self.done_q else "s_waitcnt lgkmcnt(0)")
                    e("s_nop 0")
                    while rd or dm:
                        if rd: sh.append([(rd.pop(0), None), (rd.pop(0), None)])
                        elif len(sh) + 2 * len(dm) <= nm: sh.append([])
                        if dm and (len(sh) % 5 in (1, 3) or not rd): sh.append(dm.pop(0))
                    self.first_pv([int(x) for x in name[1:]], sh)
                    self.stamp(name)
                elif name == 'L':
                    for x in loads(' '.join(args)): self.emit_load(x)
                elif name == 'R':
                    for x in args:
                        for i, r in enumerate(RD[x]):
                            if i == 8: e("s_waitcnt lgkmcnt(2)")
                            e(r)
            for x in self.base('V', T3): e(x)
        for vi in reversed(range(len(variants))):
            self.vm, self.nst, self.done_q, self.sfx = list(vm0), nst0, '', f"_{vi}"
            self.sfxs.append(self.sfx)
            if vi == 1:
                save = self.L; self.L = []
                self.lab("L_var1")
                variant(variants[1])
                e("s_branch L_join")
                self.var1 = self.L; self.L = save
            else:
                variant(variants[0])
        self.lab("L_join")
        self.stamp('loop')
        if o.get('stamp'): e("s_memrealtime s[24:25]")
        e("s_waitcnt lgkmcnt(0)")
        e(f"s_cmp_eq_u32 {sr(S_N)}, 1")
        e("s_cbranch_scc1 L_drain")

    def period(self, u):
        o = self.o
        G = NS // 4
        pat = o.get('pattern', PATTERN)
        mf = [None]*NS
        qk_end = {}
        for qb in range(4):
            b = G*qb
            for k in range(16):
                kb, s = kpos(k)
                mf[b + k] = self.mfma_qk(qb, kb, s, head=(k % 4 == 0))
                qk_end[(qb, kb)] = b + k
            pq = (qb + 3) % 4
            mf[b+16] = self.mfma_sum(pq)
            for k in range(16):
                mf[b + 17 + k] = self.mfma_pv(pq, *vpos(k))
        salu = [[] for _ in range(NS)]
        def put(k, x): salu[k].append(x)
        fill = [[] for _ in range(NS)]
        ne = 60; nc = 30; nv = 0; nk = 0; nd = 0
        vslot = []; kslot = []; pos = {}
        for k, tok in enumerate(pat):
            for t in tok:
                if t == 'e':
                    qb, el = (ne // 16) % 4, ne % 16
                    if ne >= 64:
                        assert k - qk_end[(qb, el // 4)] >= 4, ("exp early", k, qb, el)
                    pos[('e', ne)] = k
                    if not o.get('no_valu'): fill[k].append(self.sm_exp(qb, el))
                    ne += 1
                elif t == 'c':
                    el2 = 2*nc + 1
                    qb, el = (el2 // 16) % 4, el2 % 16
                    assert pos[('e', el2)] < k, ("cvt early", k)
                    dead = (G*((qb+1) % 4) + 16) + (NS if (qb == 3 and el2 >= 64) else 0)
                    assert k < dead - 1, ("cvt late", k, qb, el)
                    if not o.get('no_valu'): fill[k].append(self.sm_cvt(qb, el))
                    nc += 1
                elif t == 'v':
                    assert k > 17 + nv // 2, ("v early", k, nv)
                    vslot.append(k)
                    db, ks = vpos(nv // 2)
                    if not o.get('no_lds'): fill[k].append(self.vread(2*(2*db+ks) + nv % 2, u))
                    nv += 1
                elif t == 'k':
                    assert k > 3*G + nk, ("k early", k, nk)
                    kslot.append(k)
                    kb, s = kpos(nk)
                    if not o.get('no_lds'): fill[k].append(self.kread(4*kb+s, (u+1) % NST))
                    nk += 1
                elif t == 'D':
                    kind, i = ('V', nd) if nd < 4 else ('K', nd - 4)
                    pos[('D', nd)] = k
                    if not o.get('no_dma'): fill[k].append(self.dma(kind, i))
                    nd += 1
                elif t == 'r':
                    pos['r'] = k
                    fill[k].append(f"v_readlane_b32 {sr(S_OFF)}, {vr(V_BT)}, {sr(S_IDX)}")
        assert (ne, nc, nv, nk, nd) == (124, 62, 32, 16, 8), (ne, nc, nv, nk, nd)
        w1, w1frags, b = o['w1'], o['w1frags'], o['bar_slot']
        issued = sum(1 for k in vslot if k < w1)
        assert w1 <= G + 16 and b - 1 <= G + 16 + w1frags
        put(w1, f"s_waitcnt lgkmcnt({issued - 2*w1frags})")
        put(b-1, "s_waitcnt vmcnt(8) lgkmcnt(0)" if not o.get('no_dma') else "s_waitcnt lgkmcnt(0)")
        assert max(vslot) < b - 1 and min(kslot) > b and pos[('D', 4)] > b + 1 and pos[('D', 3)] < b - 1
        if not o.get('no_barrier'): put(b, "s_barrier")
        put(o['kwait'], "s_waitcnt lgkmcnt(0)")
        put(pos[('D', 0)] - 2, self.m0('V', (u + NST - 1) % NST))
        put(b+1, self.m0('K', u))
        kb_ = self.base('K', S_OFF); vb_ = self.base('V', S_OFF)
        r = pos['r']
        put(r+1, kb_[0]); put(r+2, kb_[1])
        assert r + 2 < b - 1
        put(b+3, vb_[0]); put(b+4, vb_[1])
        put(b+5, f"s_add_u32 {sr(S_IDX)}, {sr(S_IDX)}, 1")
        put(b+6, f"s_cmp_eq_u32 {sr(S_IDX)}, {sr(S_END)}")
        if o.get('pstamp'):
            put(b+7, "s_memtime s[100:101]")
            fill[88].append("s_waitcnt lgkmcnt(0)")
            fill[88].append(f"v_cmp_eq_u32 vcc, {sr(S_IDX)}, {vr(V_LANE)}")
            fill[92].append("v_mov_b32 v14, s100")
            fill[92].append("v_cndmask_b32 v15, v15, v14, vcc")
        self.c(f"---- period, stage {u}")
        for k in range(NS):
            self.e(mf[k])
            assert len(salu[k]) <= 1 and not (salu[k] and 'D' in pat[k]), k
            for x in salu[k]: self.e(x)
            for x in fill[k]: self.e(x)

    def finish_block(self, qb, pk):
        out = []
        r = vr(V_KT + 2*qb, 2)
        for p in range(4):
            b = V_O + 32*qb + 8*p
            if pk:
                out += [f"v_pk_mul_f32 {vr(b+2*i,2)}, {vr(b+2*i,2)}, {r}" for i in range(4)]
            else:
                out += [f"v_mul_f32 {vr(b+i)}, {vr(b+i)}, {vr(V_KT+2*qb)}" for i in range(8)]
            out += [f"v_cvt_pk_bf16_f32 {vr(b+i)}, {vr(b+2*i)}, {vr(b+2*i+1)}" for i in range(4)]
        return out
    def stage_write(self, qb, p):
        return f"ds_write_b128 {vr(V_QA+p)}, {vr(V_O+32*qb+8*p,4)} offset:{4096*(qb%2)}"
    def readback(self, qb, i):
        return f"ds_read2_b64 {vr(V_O+32*qb+8*i+4,4)}, {vr((V_QA+4 if qb % 2 else V_QD)+i)} offset0:0 offset1:16"
    def store(self, qb, i):
        if self.o.get('no_store'): return "s_nop 0"
        return f"buffer_store_dwordx4 {vr(V_O+32*qb+8*i+4,4)}, v9, {sr(SRD_O,4)}, {sr(self.QO[qb])} offen" + (f" offset:{1024*i}" if i else "") + self.o.get('st_flags', '')
    def lsum(self, qb):
        t = V_KT + 2*qb
        return [f"v_accvgpr_read_b32 {vr(t)}, {ar(A_L+4*qb)}", f"v_accvgpr_read_b32 {vr(t+1)}, {ar(A_L+4*qb+1)}",
                f"v_add_f32 {vr(t)}, {vr(t)}, {vr(t+1)}"]
    def epi_setup(self):
        out = []; e = out.append
        e(f"v_lshrrev_b32 v1, 5, {vr(V_LANE)}")
        e("v_and_b32 v11, 7, v4")
        e("v_xor_b32 v1, v1, v11")
        e("v_and_b32 v11, 1, v3")
        e("v_lshl_add_u32 v1, v11, 3, v1")
        e("v_lshlrev_b32 v1, 4, v1")
        e("v_lshl_add_u32 v1, v4, 8, v1")
        e(f"v_add_u32 {vr(V_QA)}, {sr(S_T)}, v1")
        for p in range(1, 4):
            e(f"v_xor_b32 {vr(V_QA+p)}, {32*p}, {vr(V_QA)}")
        e("v_lshrrev_b32 v1, 2, v4")
        e("v_and_b32 v11, 1, v4")
        e("v_lshl_add_u32 v1, v1, 1, v11")
        e("v_xor_b32 v1, v1, v3")
        e("v_bfe_u32 v11, v4, 1, 1")
        e("v_lshl_add_u32 v1, v1, 1, v11")
        e("v_lshlrev_b32 v1, 3, v1")
        e("v_lshl_add_u32 v1, v3, 8, v1")
        e(f"v_add_u32 {vr(V_QD)}, {sr(S_T)}, v1")
        e(f"v_xor_b32 {vr(V_QD+1)}, 0x440, {vr(V_QD)}")
        e(f"v_xor_b32 {vr(V_QD+2)}, 0x800, {vr(V_QD)}")
        e(f"v_xor_b32 {vr(V_QD+3)}, 0xc40, {vr(V_QD)}")
        for i in range(4):
            e(f"v_xor_b32 {vr(V_QA+4+i)}, 0x1000, {vr(V_QD+i)}")
        e(f"v_lshlrev_b32 v9, 4, {vr(V_LANE)}")
        return out
    def finish_all(self, start):
        e = self.e
        lag = self.o['stlag']
        lds = []
        T = 16 + 1
        for t in range(T + lag + 4):
            qb, g = t // 4, t % 4
            if t < 16:
                if g == 0: self.stamp(f'e{qb}')
                for x in self.finish_block(qb, True)[8*g:8*g+8]: e(x)
            for b in range(4):
                i = t - (4*b + 4 + lag)
                if t >= T: continue
                if 0 <= i < 4:
                    if i == 0: e(f"s_waitcnt lgkmcnt({len(lds) - 1 - lds.index(('r', b, 3))})")
                    e(self.store(b, i)); lds_done = True
                    self.stored.add((b, i))
            if 1 <= t <= 16:
                pb, pg = (t-1) // 4, (t-1) % 4
                e(self.stage_write(pb, pg)); lds.append(('w', pb, pg))
                if pg == 3:
                    for i in range(4):
                        e(self.readback(pb, i)); lds.append(('r', pb, i))
        for b in range(4):
            for i in range(4):
                if (b, i) not in self.stored:
                    e(f"s_waitcnt lgkmcnt({len(lds) - 1 - lds.index(('r', b, i))})")
                    e(self.store(b, i))

    def drain(self):
        e = self.e; o = self.o
        self.lab("L_drain")
        self.stamp('drain')
        for el in range(12, 16): e(self.sm_exp(3, el))
        e(f"s_lshl_b32 {sr(S_T)}, {sr(S_W)}, 13")
        for el in (13, 15): e(self.sm_cvt(3, el))
        e(f"s_add_u32 {sr(S_T)}, {sr(S_T)}, {LDS_O}")
        e("s_nop 0")
        fill = self.lsum(0) + self.lsum(1) + self.lsum(2) + self.epi_setup()[:8] + self.lsum(3) + self.epi_setup()[8:]
        T = V_KT
        guard = [f"v_max3_f32 v1, {vr(T)}, {vr(T+2)}, {vr(T+4)}", f"v_add_f32 v11, {vr(T)}, {vr(T+2)}",
                 f"v_max_f32 v1, v1, {vr(T+6)}", f"v_add_f32 v10, {vr(T+4)}, {vr(T+6)}",
                 f"v_cmp_nle_f32 vcc, v1, {vr(V_G4)}", "v_add_f32 v11, v11, v10"]
        fill.insert(0, f"v_mov_b32 {vr(V_G4)}, {hex(f32bits(2.0**o['thr']))}")
        fill += guard
        for x in [self.mfma_sum(3)] + [self.mfma_pv(3, *vpos(k)) for k in range(16)]:
            e(x)
            for _ in range(2):
                if fill: e(fill.pop(0))
        while fill: e(fill.pop(0))
        e("v_cmp_u_f32 s[60:61], v11, v11")
        for qb in range(4): e(f"v_rcp_f32 {vr(T+2*qb)}, {vr(T+2*qb)}")
        e("s_or_b64 vcc, vcc, s[60:61]")
        e("s_cbranch_vccnz L_slow")
        self.lab("L_epi_ok")
        for qb in range(4): e(f"v_mov_b32 {vr(T+2*qb+1)}, {vr(T+2*qb)}")

    def epilogue(self):
        e = self.e; o = self.o
        self.stamp('epi')
        if o.get('stamp'): e("s_memrealtime s[30:31]")
        self.finish_all(0)
        if o.get('stamp'):
            self.stamp('stored')
            e("s_waitcnt vmcnt(0)")
            e("s_memtime s[62:63]")
            e("s_memrealtime s[64:65]")
            e("s_getreg_b32 s66, hwreg(HW_REG_XCC_ID)")
            e("s_getreg_b32 s67, hwreg(HW_REG_HW_ID)")
            e("s_waitcnt lgkmcnt(0)")
            e("v_mov_b32 v16, 0")
            n = self.nst
            for k in range(n):
                e(f"v_writelane_b32 v16, {sr(STAMP_REG[k])}, {k}")
            for k, r in enumerate((62, 64, 66, 67, 94, 24, 30)):
                e(f"v_writelane_b32 v16, s{r}, {n+k}")
            e(f"s_lshl_b32 {sr(S_T)}, s2, 2")
            e(f"s_add_u32 {sr(S_T)}, {sr(S_T)}, {sr(S_W)}")
            e(f"s_lshl_b32 {sr(S_T)}, {sr(S_T)}, 8")
            e(f"v_lshlrev_b32 v17, 2, {vr(V_LANE)}")
            e(f"buffer_store_dword {'v15' if o.get('pstamp') else 'v16'}, v17, {sr(SRD_D,4)}, {sr(S_T)} offen")
        self.lab("L_end")
        e("s_endpgm")
        self.L += getattr(self, 'var1', [])
        self.lab("L_code_end")
        self.L += self.ool
        self.slow()
        for sfx in self.sfxs:
            for qb in range(4):
                self.lab(f"L_zeroq{qb}{sfx}")
                for i in range(16):
                    e(f"v_accvgpr_write_b32 {ar(A_Q+16*qb+i)}, 0")
                e("s_nop 1")
                e(f"s_branch L_zeroq_ret{qb}{sfx}")

    def slow(self):
        e = self.e
        KA2 = 12; VA2 = V_VA
        SS = lambda qb: V_S + 8*qb
        ST, SN, SP, PGA, PGB = 76, 77, 78, 79, 80
        e_nop = lambda: e("s_nop 7")
        self.lab("L_slow")
        e("s_waitcnt vmcnt(0) lgkmcnt(0)")
        for s in range(4):
            e(f"v_add_u32 {vr(KA2+s)}, {sr(S_DMAB)}, {vr(V_KA+s)}")
        for db in range(8):
            e(f"v_add_u32 {vr(VA2+db)}, {sr(S_DMAB)}, {vr(V_VA+db)}")
        for i in range(16):
            e(f"v_mov_b32 {vr(V_P+i)}, 0")
        for qb in range(4):
            e(f"v_mov_b32 {vr(V_NEGM+4*qb)}, {vr(V_NINF)}")
        e(f"s_add_u32 {sr(SN)}, {sr(S_CL)}, 31")
        e(f"s_lshr_b32 {sr(SN)}, {sr(SN)}, 5")
        e(f"s_mov_b32 {sr(SP)}, 0")
        Z = ar(A_Z, 4)
        for i in range(8):
            e(f"v_mfma_f32_32x32x16_bf16 {vr(V_O+16*i,16)}, {Z}, {Z}, 0")
        e(f"v_mfma_f32_32x32x16_bf16 {ar(A_L,16)}, {Z}, {Z}, 0")
        self.lab("L_slow_pass")
        e(f"s_mov_b32 {sr(ST)}, 0")
        self.lab("L_slow_tile")
        e(f"s_lshl_b32 {sr(S_T2)}, {sr(ST)}, 3")
        e(f"s_load_dwordx2 s[82:83], {sr(S_PTR+6,2)}, {sr(S_T2)}")
        e(f"s_lshl_b32 {sr(S_T2)}, {sr(ST)}, 5")
        e(f"s_sub_u32 {sr(S_T2)}, {sr(S_CL)}, {sr(S_T2)}")
        e(f"v_lshlrev_b32 v10, 2, v3")
        e(f"v_sub_u32 v10, {sr(S_T2)}, v10")
        e("s_waitcnt lgkmcnt(0)")
        e(f"s_cmp_gt_u32 {sr(S_T2)}, 16")
        e("s_cselect_b32 s83, s83, 0")
        for r, d in ((82, PGA), (83, PGB)):
            e(f"s_min_u32 s{r}, s{r}, 0x83")
            e(f"s_lshl_b32 s{r}, s{r}, 16")
            e(f"s_add_u32 {sr(d)}, s{r}, {sr(S_HEAD)}")
        for kind in 'KV':
            for st, off in ((0, PGA), (1, PGB)):
                for x in self.base(kind, off): e(x)
                e(self.m0(kind, st)); e("s_nop 0")
                for i in range(4): e(self.dma(kind, i))
        for j in range(8):
            e(f"v_cmp_lt_i32 {sr(S_MASK+2*j,2)}, {16*(j//4)+j%4}, v10")
        e("s_waitcnt vmcnt(0)")
        for db in range(8):
            for u in range(2):
                e(f"ds_read_b64_tr_b16 {ar(A_V+8*db+2*u,2)}, {vr(VA2+db)} offset:{16384*u}")
            if db % 4 == 3: e("s_waitcnt lgkmcnt(0)")
        for kb in range(2):
            for s in range(4):
                e(f"ds_read_b128 {vr(V_KT+4*s,4)}, {vr(KA2+s)} offset:{16384*kb}")
            e("s_waitcnt lgkmcnt(0)")
            for qb in range(4):
                for s in range(4):
                    d = vr(SS(qb) + 4*kb, 4)
                    e(f"{MF} {d}, {vr(V_KT+4*s,4)}, {ar(A_Q+16*qb+4*s,4)}, {d if s else 0}")
        e_nop()
        e(f"s_cmp_eq_u32 {sr(S_ZERO)}, 0")
        e("s_cbranch_scc1 L_slow_nz")
        for qb in range(4):
            for j in range(8):
                e(f"v_mov_b32 {vr(SS(qb)+j)}, 0")
        self.lab("L_slow_nz")
        for qb in range(4):
            for j in range(8):
                e(f"v_cndmask_b32 {vr(SS(qb)+j)}, {vr(V_NINF)}, {vr(SS(qb)+j)}, {sr(S_MASK+2*j,2)}")
        e(f"s_cmp_eq_u32 {sr(SP)}, 0")
        e("s_cbranch_scc0 L_slow_p1")
        for qb in range(4):
            for j in range(0, 8, 2):
                e(f"v_max3_f32 {vr(V_NEGM+4*qb)}, {vr(V_NEGM+4*qb)}, {vr(SS(qb)+j)}, {vr(SS(qb)+j+1)}")
        e("s_branch L_slow_next")
        self.lab("L_slow_p1")
        for qb in range(4):
            for j in range(8):
                e(f"v_sub_f32 {vr(SS(qb)+j)}, {vr(SS(qb)+j)}, {vr(V_NEGM+4*qb)}")
            for j in range(8): e(f"v_exp_f32 {vr(SS(qb)+j)}, {vr(SS(qb)+j)}")
            e("s_nop 0")
            for j in range(4): e(f"v_cvt_pk_bf16_f32 {vr(PB(qb)+j)}, {vr(SS(qb)+2*j)}, {vr(SS(qb)+2*j+1)}")
            e("s_nop 1")
            e(self.mfma_sum(qb))
            for db in range(8): e(self.mfma_pv(qb, db, 0))
        self.lab("L_slow_next")
        e(f"s_add_u32 {sr(ST)}, {sr(ST)}, 1")
        e(f"s_cmp_lt_u32 {sr(ST)}, {sr(SN)}")
        e("s_cbranch_scc1 L_slow_tile")
        e(f"s_cmp_eq_u32 {sr(SP)}, 0")
        e("s_cbranch_scc0 L_slow_done")
        for sw in ("v_permlane32_swap_b32", "v_permlane16_swap_b32"):
            for qb in range(4): e(f"v_mov_b32 {vr(V_NEGM+4*qb+1)}, {vr(V_NEGM+4*qb)}")
            e("s_nop 1")
            for qb in range(4): e(f"{sw} {vr(V_NEGM+4*qb)}, {vr(V_NEGM+4*qb+1)}")
            for qb in range(4): e(f"v_max_f32 {vr(V_NEGM+4*qb)}, {vr(V_NEGM+4*qb)}, {vr(V_NEGM+4*qb+1)}")
        e(f"s_mov_b32 {sr(SP)}, 1")
        e("s_branch L_slow_pass")
        self.lab("L_slow_done")
        e_nop(); e_nop()
        for qb in range(4):
            for x in self.lsum(qb): e(x)
        for qb in range(4): e(f"v_rcp_f32 {vr(V_KT+2*qb)}, {vr(V_KT+2*qb)}")
        e("s_nop 0")
        e("s_branch L_epi_ok")

    def build(self):
        self.prologue()
        if self.o.get('align'):
            self.L.append(f".p2align {self.o['align']}")
        self.lab("L_loop")
        for j in range(NST):
            self.period(j)
            if j < NST - 1:
                if not self.o.get('nobr'): self.e("s_cbranch_scc1 L_drain")
                if self.o.get('palign'): self.L.append(f".p2align {self.o['palign']}")
            else:
                self.e("s_cbranch_scc0 L_loop")
        self.drain()
        self.epilogue()
        body = "\n".join(self.L)
        return (HEADER + f"; @launch grid=(256,1,1) block=(256,1,1) lds={LDS_O+32768}\n"
                ".amdgcn_target \"amdgcn-amd-amdhsa--gfx950\"\n.text\n"
                f".globl {NAME}_kernel\n.p2align 8\n.type {NAME}_kernel,@function\n{NAME}_kernel:\n"
                + body + "\n"
                ".section .rodata,\"a\"\n.p2align 6\n"
                f".amdhsa_kernel {NAME}_kernel\n"
                "  .amdhsa_next_free_vgpr 512\n  .amdhsa_next_free_sgpr 102\n  .amdhsa_accum_offset 256\n"
                "  .amdhsa_group_segment_fixed_size 0\n  .amdhsa_kernarg_size 64\n  .amdhsa_user_sgpr_count 2\n"
                "  .amdhsa_user_sgpr_kernarg_segment_ptr 1\n  .amdhsa_system_sgpr_workgroup_id_x 1\n"
                ".end_amdhsa_kernel\n")


DEFAULT = dict(stlag=3, kwait=128, align=6, wbatch=2, thr=30, kindbit=7, nq_early2=0, ld_a2='k0 v0 k1 v1 q0', seq2='L:q1,q2 s0:q3 A:k0,v0,k1,v1 s1 Q01:V0 P01:V1,K1,k2,v2 s2 Q2 P2:k3 s3 Q3',
    stamps=['start','karg','bt','issued','prebar','loop','epi','stored'], w1=49, w1frags=12, bar_slot=58, mixinit=True, nq_early=2, ld_a='k0 v0', seq='s0:q2 s1:q3 A:k0,v0 Q01:V0 P01:V1,k1,v1 s2 Q2 P2:k2 B:k1,v1 R:K1 s3:v2,k3 Q3', pf=True, st_flags=' sc0 sc1 nt')

def parse_opts(args):
    o = dict(DEFAULT)
    for a in args:
        k, _, v = a.partition("=")
        if v == "": o[k] = True
        else:
            try: o[k] = eval(v)
            except Exception: o[k] = v
    return o

if __name__ == "__main__":
    o = parse_opts(sys.argv[2:])
    open(sys.argv[1], "w").write(Gen(o).build())
```
